```python
import torch

def _softmax(x, axis=-1):
    return torch.softmax(x, dim=axis)
def _gelu(x):
    return torch.nn.functional.gelu(x, approximate="tanh")
def _silu(x):
    return torch.nn.functional.silu(x)
def _sigmoid(x):
    return torch.sigmoid(x)
def _layernorm(x, axis=-1, eps=1e-5):
    m = x.mean(dim=axis, keepdim=True)
    v = x.var(dim=axis, keepdim=True, unbiased=False)
    return (x - m) / torch.sqrt(v + eps)
def _scatter_add(tgt, idx, src, axis=0):
    return tgt.clone().index_add_(axis, idx, src)
def _segment_sum(src, seg, n):
    out = torch.zeros((n,) + src.shape[1:], dtype=src.dtype)
    return out.index_add_(0, seg, src)
def _pad(x, pw):
    flat = tuple(v for pair in reversed(pw) for v in pair)
    return torch.nn.functional.pad(x, flat)

kernel_name = 'concat_heads__mha_block_cached__gqa_block_cached__near_ridge'

def setup_inputs():

    _w = (lambda a: (lambda t: t.to(torch.bfloat16) if t.is_floating_point() else t)(torch.as_tensor(a)))
    def _A_setup():
        B, Sq, D = 8, 256, 512
        H, Sk, Dh = 32, 1024, 128
        return {
            "x": _w((lambda *s: torch.randn(*s, dtype=torch.bfloat16) * 0.8)(B, Sq, D)),
            "k_cache": _w((lambda *s: torch.randn(*s, dtype=torch.bfloat16) * 0.8)(B, H, Sk, Dh)),
            "v_cache": _w((lambda *s: torch.randn(*s, dtype=torch.bfloat16) * 0.05)(B, H, Sk, Dh)),
            "wq": _w((lambda *s: torch.randn(*s, dtype=torch.bfloat16) * 0.8)(D, H * Dh) * (D ** -0.5)),
            "wo": _w((lambda *s: torch.randn(*s, dtype=torch.bfloat16) * 0.05)(H * Dh, D) * ((H * Dh) ** -0.5)),
        }
    _A_in = _A_setup()

    def _B_setup():
        B, Sq, D = 8, 256, 512
        Hq, Hkv, Sk, Dh = 32, 32, 1024, 128
        assert Hq % Hkv == 0, (Hq, Hkv)
        return {
            "x": _w((lambda *s: torch.randn(*s, dtype=torch.bfloat16) * 0.8)(B, Sq, D)),
            "k_cache": _w((lambda *s: torch.randn(*s, dtype=torch.bfloat16) * 0.8)(B, Hkv, Sk, Dh)),
            "v_cache": _w((lambda *s: torch.randn(*s, dtype=torch.bfloat16) * 0.05)(B, Hkv, Sk, Dh)),
            "wq": _w((lambda *s: torch.randn(*s, dtype=torch.bfloat16) * 0.8)(D, Hq * Dh) * (D ** -0.5)),
            "wo": _w((lambda *s: torch.randn(*s, dtype=torch.bfloat16) * 0.05)(Hq * Dh, D) * ((Hq * Dh) ** -0.5)),
        }
    _B_in = _B_setup()

    return {
        "A_x": _A_in["x"],
        "A_k_cache": _A_in["k_cache"],
        "A_v_cache": _A_in["v_cache"],
        "A_wq": _A_in["wq"],
        "A_wo": _A_in["wo"],
        "B_x": _B_in["x"],
        "B_k_cache": _B_in["k_cache"],
        "B_v_cache": _B_in["v_cache"],
        "B_wq": _B_in["wq"],
        "B_wo": _B_in["wo"],
    }

def reference(A_x, A_k_cache, A_v_cache, A_wq, A_wo, B_x, B_k_cache, B_v_cache, B_wq, B_wo):
    def _A_ref(x, k_cache, v_cache, wq, wo):
        B, Sq, D = x.shape
        H, Dh = 32, 128
        q = (lambda x, *d: x.permute(*d))((x @ wq).reshape(B, Sq, H, Dh), 0, 2, 1, 3)
        scores = torch.einsum("bhqd,bhkd->bhqk", q, k_cache) * (Dh ** -0.5)
        p = _softmax(scores, axis=-1)
        o = torch.einsum("bhqk,bhkd->bhqd", p, v_cache)
        return (lambda x, *d: x.permute(*d))(o, 0, 2, 1, 3).reshape(B, Sq, H * Dh) @ wo

    def _B_ref(x, k_cache, v_cache, wq, wo):
        B, Sq, D = x.shape
        Hq, Dh = 32, 128
        Hkv = k_cache.shape[1]
        rep = Hq // Hkv
        q = (lambda x, *d: x.permute(*d))((x @ wq).reshape(B, Sq, Hq, Dh), 0, 2, 1, 3)
        k = (lambda x, n, axis: torch.repeat_interleave(x, n, dim=axis))(k_cache, rep, axis=1)
        v = (lambda x, n, axis: torch.repeat_interleave(x, n, dim=axis))(v_cache, rep, axis=1)
        scores = torch.einsum("bhqd,bhkd->bhqk", q, k) * (Dh ** -0.5)
        p = _softmax(scores, axis=-1)
        o = torch.einsum("bhqk,bhkd->bhqd", p, v)
        return (lambda x, *d: x.permute(*d))(o, 0, 2, 1, 3).reshape(B, Sq, Hq * Dh) @ wo

    a = _A_ref(A_x, A_k_cache, A_v_cache, A_wq, A_wo)
    b = _B_ref(B_x, B_k_cache, B_v_cache, B_wq, B_wo)
    return torch.concatenate([a, b], axis=-1)
```

```python
import re

class Ins:
    __slots__ = ('t', 'k', 'r', 'w', 'tag', 'meta')
    def __init__(self, t, k, r=(), w=(), tag=None, meta=None):
        self.t = t; self.k = k; self.r = frozenset(r); self.w = frozenset(w); self.tag = tag; self.meta = meta or {}
    def __repr__(self): return f"<{self.k}:{self.t}>"

def R(f, b, n=1):
    return [f"{f}{b+i}" for i in range(n)]
def F(f, b, n=1):
    return f"{f}{b}" if n == 1 else f"{f}[{b}:{b+n-1}]"

def opregs(o):
    o = o.strip()
    m = re.fullmatch(r'-?([vas])(\d+)', o)
    if m: return [f"{m.group(1)}{m.group(2)}"]
    m = re.fullmatch(r'([vas])\[(\d+):(\d+)\]', o)
    if m: return [f"{m.group(1)}{i}" for i in range(int(m.group(2)), int(m.group(3))+1)]
    if o in ('m0', 'vcc', 'exec', 'scc'): return [o]
    return []

TRANS = ('v_exp_f32', 'v_log_f32', 'v_rcp_f32', 'v_rsq_f32', 'v_sqrt_f32')

def valu(op, d, *src, extra=''):
    r = []
    for s in src: r += opregs(str(s))
    w = opregs(d)
    k = 'trans' if op in TRANS else 'valu'
    meta = {}
    if op.startswith('v_permlane'):
        r += w; w = w + opregs(str(src[0])); meta['permlane'] = True
    if op.startswith('v_fmac'): r += w
    if op.startswith('v_readfirstlane') or op.startswith('v_readlane'): meta['readlane'] = True
    if op.startswith('v_cndmask') and len(src) == 2: r.append('vcc')
    t = f"{op} {d}, " + ", ".join(str(s) for s in src) + (" " + extra if extra else "")
    return Ins(t, k, r, w, meta=meta)

def salu(op, d, *src):
    r = []
    for s in src: r += opregs(str(s))
    w = opregs(d) if d is not None else []
    base = op
    if op.startswith('s_cmp'):
        r += opregs(str(d)); w = ['scc']
    elif op.startswith('s_cselect') or op.startswith('s_addc') or op.startswith('s_subb'):
        r.append('scc')
        if not op.startswith('s_cselect'): w = w + ['scc']
    elif op.startswith(('s_add', 's_sub', 's_lshl', 's_lshr', 's_and', 's_or', 's_xor', 's_min', 's_max', 's_bfe', 's_ashr')):
        w = w + ['scc']
    t = f"{op} {d}" + "".join(f", {s}" for s in src)
    return Ins(t, 'salu', r, w)

def mfma(D, A, B, C):
    r = opregs(A) + opregs(B) + opregs(C)
    return Ins(f"v_mfma_f32_16x16x32_bf16 {D}, {A}, {B}, {C}", 'mfma', r, opregs(D),
               meta={'A': frozenset(opregs(A)), 'B': frozenset(opregs(B)), 'C': frozenset(opregs(C)), 'D': frozenset(opregs(D))})

def dsr(op, d, addr, off=0):
    assert 0 <= off < 65536, off
    return Ins(f"{op} {d}, {addr}" + (f" offset:{off}" if off else ""), 'ds', opregs(addr), opregs(d))
def dsw(op, addr, s, off=0):
    assert 0 <= off < 65536
    return Ins(f"{op} {addr}, {s}" + (f" offset:{off}" if off else ""), 'ds', opregs(addr) + opregs(s), [], meta={'dswrite': True})

def bload(op, d, voff, srd, soff, off=0, tag=None, flags=''):
    assert 0 <= off < 4096, off
    t = f"{op} {d}, {voff}, {srd}, {soff} offen" + (f" offset:{off}" if off else "") + (f" {flags}" if flags else "")
    return Ins(t, 'vmem', opregs(voff) + opregs(srd) + opregs(str(soff)), opregs(d), tag=tag)
def bdma(voff, srd, soff, off=0, tag=None, flags=''):
    assert 0 <= off < 4096, off
    t = f"buffer_load_dwordx4 {voff}, {srd}, {soff} offen" + (f" offset:{off}" if off else "") + (f" {flags}" if flags else "") + " lds"
    return Ins(t, 'vmem', opregs(voff) + opregs(srd) + opregs(str(soff)) + ['m0'], [], tag=tag, meta={'dma': True})
def bstore(op, s, voff, srd, soff, off=0, tag=None, flags=''):
    assert 0 <= off < 4096, off
    t = f"{op} {s}, {voff}, {srd}, {soff} offen" + (f" offset:{off}" if off else "") + (f" {flags}" if flags else "")
    return Ins(t, 'vmem', opregs(s) + opregs(voff) + opregs(srd) + opregs(str(soff)), [], tag=tag,
               meta={'store': True, 'data': frozenset(opregs(s)), 'wide': op.endswith(('x4', 'x3'))})

def raw(t, k='misc', r=(), w=()): return Ins(t, k, r, w)
def label(n): return Ins(f"{n}:", 'label')
def barrier(): return Ins("s_barrier", 'barrier')
def nop(n): return Ins(f"s_nop {n}", 'nop', meta={'n': n})
def waitlg(regs, key=None):
    return Ins(None, 'waitlg', meta={'regs': frozenset(regs), 'N': None})
def waitlg0(): return Ins("s_waitcnt lgkmcnt(0)", 'wait', meta={'lg': 0})
def waitvm0(): return Ins("s_waitcnt vmcnt(0)", 'wait', meta={'vm': 0})
def waitvm(tagfn):
    return Ins(None, 'waitvm', meta={'tagfn': tagfn, 'N': None})

class Block:
    def __init__(self, name, ins=None):
        self.name = name; self.ins = list(ins or [])
    def add(self, *x):
        for i in x:
            if isinstance(i, (list, tuple)): self.add(*i)
            else: self.ins.append(i)
    def text(self):
        out = []
        for i in self.ins:
            if i.k == 'label': out.append(i.t)
            elif i.k == 'waitlg': out.append(f"    s_waitcnt lgkmcnt({i.meta['N']})")
            elif i.k == 'waitvm': out.append(f"    s_waitcnt vmcnt({i.meta['N']})")
            else: out.append("    " + i.t)
        return "\n".join(out)

def resolve_waits(trace):
    lg = []
    vm = []
    for blk, ctx in trace:
        for i in blk.ins:
            if i.k == 'ds': lg.append(i.w)
            elif i.k == 'vmem':
                tg = i.tag(ctx) if callable(i.tag) else i.tag
                if tg != 'SIG': vm.append(tg)
            elif i.k == 'waitlg':
                n = None
                for j in range(len(lg)-1, -1, -1):
                    if lg[j] & i.meta['regs']:
                        n = len(lg)-1-j; break
                if n is None: n = 15
                n = min(n, 15)
                i.meta['N'] = n if i.meta['N'] is None else min(i.meta['N'], n)
            elif i.k == 'waitvm':
                tags = i.meta['tagfn'](ctx)
                n = None
                for j in range(len(vm)-1, -1, -1):
                    if vm[j] in tags:
                        n = len(vm)-1-j; break
                if n is None:
                    n = 63
                n = min(n, 63)
                i.meta['N'] = n if i.meta['N'] is None else min(i.meta['N'], n)

def check_waits(trace, verbose=False):
    errs = []
    lg = []; vm = []
    maxvm = 0
    for blk, ctx in trace:
        for idx, i in enumerate(blk.ins):
            if i.k in ('waitlg', 'wait') and (i.k == 'waitlg' or 'lg' in i.meta):
                n = i.meta['N'] if i.k == 'waitlg' else i.meta['lg']
                if len(lg) > n: lg = lg[len(lg)-n:] if n else []
            if i.k in ('waitvm', 'wait') and (i.k == 'waitvm' or 'vm' in i.meta):
                n = i.meta['N'] if i.k == 'waitvm' else i.meta['vm']
                if len(vm) > n: vm = vm[len(vm)-n:] if n else []
            touched = i.r | i.w
            for p in lg:
                if p & touched: errs.append(f"{blk.name}[{idx}] {i.t}: touches pending ds dest {sorted(p & touched)}")
            for p in vm:
                if p & touched: errs.append(f"{blk.name}[{idx}] {i.t}: touches pending vmem dest {sorted(p & touched)}")
            if i.k == 'ds':
                lg.append(i.w)
                if len(lg) > 15: errs.append(f"{blk.name}[{idx}] more than 15 ds outstanding")
            if i.k == 'vmem' and i.tag != 'SIG':
                vm.append(i.w); maxvm = max(maxvm, len(vm))
                if len(vm) > 63: errs.append(f"{blk.name}[{idx}] more than 63 vmem outstanding")
    if verbose: print("max vm outstanding (upper bound)", maxvm)
    return errs

def states(i):
    if i.k == 'label' or i.meta.get('cond'): return 0
    if i.k == 'nop': return i.meta['n'] + 1
    return 1

def need(p, c):
    n = 0
    pv = p.k in ('valu', 'trans'); cv = c.k in ('valu', 'trans')
    if pv:
        pw_v = {x for x in p.w if x[0] in 'va' and x != 'vcc'}
        pw_s = {x for x in p.w if x[0] == 's' or x == 'vcc'}
        if c.k == 'mfma' and pw_v & c.r: n = max(n, 2)
        if p.k == 'trans' and c.k == 'valu' and pw_v & c.r: n = max(n, 1)
        if c.meta.get('permlane') and pw_v & c.r: n = max(n, 2)
        if c.meta.get('readlane') and pw_v & c.r: n = max(n, 1)
        if pw_s:
            if c.k == 'vmem' and pw_s & c.r: n = max(n, 5)
            if cv and pw_s & c.r: n = max(n, 2)
            if c.k == 'salu' and pw_s & c.r: n = max(n, 2)
    if p.k == 'mfma':
        D = p.meta['D']
        if c.k == 'mfma':
            if D & (c.meta['A'] | c.meta['B']): n = max(n, 8)
            if D & c.meta['C'] and c.meta['C'] != D: n = max(n, 6)
            if D & c.meta['D'] and not (c.meta['C'] == D):
                n = max(n, 6)
        elif cv:
            if D & (c.r | c.w): n = max(n, 8)
            if p.meta['C'] & c.w: n = max(n, 3)
        elif c.k in ('ds', 'vmem'):
            if D & (c.r | c.w): n = max(n, 8)
    if p.k == 'salu' and 'm0' in p.w and c.meta.get('dma'): n = max(n, 1)
    if p.k == 'vmem' and p.meta.get('store') and p.meta.get('wide'):
        if p.meta['data'] & c.w: n = max(n, 2 if cv else 1)
    if p.k == 'ds' and p.meta.get('dswrite') and cv and (p.r & c.w): n = max(n, 2)
    return n

def hazards(trace, fix_blocks=()):
    errs = []
    changed = True
    while changed:
        changed = False
        errs = []
        hist = []
        for blk, ctx in trace:
            idx = 0
            while idx < len(blk.ins):
                c = blk.ins[idx]
                if c.k not in ('label', 'nop'):
                    d = 0; short = 0
                    for p in reversed(hist):
                        nd = need(p, c)
                        if nd > d: short = max(short, nd - d)
                        d += states(p)
                        if d >= 10: break
                    if short:
                        if blk.name in fix_blocks:
                            blk.ins.insert(idx, nop(short-1)); changed = True
                            c = blk.ins[idx]
                        else:
                            errs.append(f"{blk.name}[{idx}] {c.t}: short by {short}")
                hist.append(c)
                if len(hist) > 24: hist.pop(0)
                idx += 1
            if changed: break
    return errs

class Sched:
    def __init__(self):
        self.m = []; self.f = {}
    def add_mfma(self, x): self.m.append(x); return len(self.m)-1
    def put(self, g, ins, cls):
        self.f.setdefault(g, {'free': [], 'mem': [], 'valu': []})[cls].append(ins)
    def flatten(self, lo, hi):
        out = []
        for g in range(lo, hi):
            out.append(self.m[g])
            d = self.f.get(g)
            if d: out += d['free'] + d['mem'] + d['valu']
        return out
    def load(self, g):
        d = self.f.get(g)
        if not d: return (0, 0)
        s = len(d['mem']) + sum(2 if i.k == 'trans' else 1 for i in d['valu'])
        return (len(d['free']), s)
```

```python
import sys, os
sys.path.insert(0, os.path.dirname(os.path.abspath(__file__)))
from asmlib import *

NAME = "concat_heads__mha_block_cached__gqa_block_cached__near_ridge"
OPT = dict(kv_flags='', stamps=False)

vKA, vVA, vKD, vVD, vOst = 8, 12, 20, 24, 26
vWA, vWD, vXA = 27, 29, 30
vNeg, vS, vKf, vVf, vP, vQ, vOnes, vL = 32, 48, 64, 80, 96, 160, 224, 228
vT = 244
vWf, vX = 64, 96
aO, aQ2 = 0, 128
sK, sV, sW, sX, sO = 8, 12, 16, 20, 24
sWv, sW4k = 28, 29
sKoff, sVoff, sKm0, sVm0 = 30, 31, 32, 33
sKrs, sVrs, sKd, sVd = 34, 35, 64, 65
sT0, sT1, sT2 = 66, 67, 68
sCnt, sItem, sOoff = 69, 70, 71
sC = 62
sThr = 72
sJ = 74
sMask = 78
sSlot = 73
SLOT = 16384
NSL = 5
KBASE, VBASE, WBASE = 0, NSL*SLOT, 3*SLOT
SCALE = 0x3E0293EE
import struct, math
SCALE = struct.unpack('<I', struct.pack('<f', math.log2(math.e)/math.sqrt(128.0)))[0]

def v(b, n=1): return F('v', b, n)
def a(b, n=1): return F('a', b, n)
def s(b, n=1): return F('s', b, n)

def stamp(n):
    if not OPT['stamps']: return []
    return [raw(f"s_memtime s[{80+2*n}:{81+2*n}]", 'misc')]

def k1_prologue():
    B = Block('pro')
    B.add(raw("s_cmp_ge_u32 s2, 256", 'salu'), raw("s_cbranch_scc1 L_k1_end", 'branch'))
    B.add(stamp(0))
    B.add(raw("s_load_dwordx16 s[36:51], s[0:1], 0"), raw("s_load_dwordx8 s[52:59], s[0:1], 64"),
          raw("s_load_dwordx2 s[60:61], s[0:1], 96"))
    B.add(valu('v_and_b32', 'v1', 63, 'v0'),
          valu('v_lshrrev_b32', 'v2', 6, 'v0'),
          valu('v_and_b32', 'v3', 15, 'v0'),
          valu('v_readfirstlane_b32', s(sWv), 'v2'),
          valu('v_lshrrev_b32', 'v4', 4, 'v1'),
          valu('v_bfe_u32', 'v5', 'v1', 2, 2),
          valu('v_and_b32', 'v6', 3, 'v1'))
    B.add(salu('s_and_b32', 's3', 's2', 7), salu('s_lshr_b32', 's4', 's2', 3),
          salu('s_lshr_b32', 's5', 's3', 2),
          salu('s_bfe_u32', 's6', 's3', 0x10001),
          salu('s_lshl_b32', 's6', 's6', 2), salu('s_and_b32', 's7', 's4', 3), salu('s_add_u32', 's6', 's6', 's7'),
          salu('s_and_b32', 's7', 's3', 1), salu('s_lshl_b32', 's7', 's7', 3), salu('s_lshr_b32', 's4', 's4', 2),
          salu('s_add_u32', 's7', 's7', 's4'),
          salu('s_lshl_b32', s(sW4k), s(sWv), 12))
    B.add(valu('v_xor_b32', 'v7', 'v4', 'v3'), valu('v_lshlrev_b32', 'v7', 4, 'v7'),
          valu('v_lshl_add_u32', v(vKA), 'v3', 8, 'v7'))
    for q in range(1, 4): B.add(valu('v_xor_b32', v(vKA+q), 64*q, v(vKA)))
    B.add(valu('v_lshl_add_u32', 'v7', 'v4', 2, 'v5'),
          valu('v_and_b32', v(vT), 7, 'v7'), valu('v_lshlrev_b32', v(vT), 5, v(vT)),
          valu('v_lshl_add_u32', v(vT), 'v7', 8, v(vT)),
          valu('v_lshl_add_u32', v(vT), 'v6', 3, v(vT)))
    for dt in range(8):
        B.add(valu('v_xor_b32', v(vVA+dt), 32*dt, v(vT)))
    for dt in range(8):
        B.add(valu('v_add_u32', v(vVA+dt), VBASE + SLOT, v(vVA+dt)))
    B.add(valu('v_lshlrev_b32', 'v7', 12, 'v2'), valu('v_lshl_add_u32', 'v7', 'v4', 8, 'v7'))
    for m in range(4):
        B.add(valu('v_add_u32', v(vT), 4*m, 'v4'), valu('v_xor_b32', v(vT), v(vT), 'v3'),
              valu('v_lshl_add_u32', v(vKD+m), v(vT), 4, 'v7'))
    for m in range(2):
        B.add(valu('v_add_u32', v(vT), 4*m, 'v4'), valu('v_lshlrev_b32', v(vT), 1, v(vT)),
              valu('v_xor_b32', v(vT), v(vT), 'v3'), valu('v_lshl_add_u32', v(vVD+m), v(vT), 4, 'v7'))
    B.add(valu('v_lshlrev_b32', 'v7', 19, 'v2'), valu('v_lshl_add_u32', v(vOst), 'v1', 4, 'v7'))
    B.add(valu('v_lshl_add_u32', 'v7', 'v4', 3, 'v5'), valu('v_lshlrev_b32', 'v7', 7, 'v7'),
          valu('v_lshrrev_b32', v(vT), 1, 'v5'), valu('v_lshlrev_b32', v(vT), 2, v(vT)),
          valu('v_xor_b32', v(vT), v(vT), 'v6'),
          valu('v_lshl_add_u32', 'v7', v(vT), 4, 'v7'),
          valu('v_add_u32', v(vWA), WBASE, 'v7'), valu('v_xor_b32', 'v7', 64, 'v7'),
          valu('v_add_u32', v(vWA+1), WBASE, 'v7'))
    B.add(valu('v_lshrrev_b32', 'v7', 3, 'v1'),
          valu('v_bfe_u32', v(vT), 'v1', 4, 1), valu('v_lshlrev_b32', v(vT), 2, v(vT)),
          valu('v_and_b32', v(vT+1), 7, 'v1'), valu('v_xor_b32', v(vT), v(vT), v(vT+1)),
          valu('v_lshl_add_u32', 'v7', 'v2', 5, 'v7'), valu('v_lshlrev_b32', 'v7', 13, 'v7'),
          valu('v_lshl_add_u32', v(vWD), v(vT), 4, 'v7'))
    B.add(valu('v_lshl_add_u32', 'v7', 'v2', 6, 'v3'), valu('v_lshlrev_b32', 'v7', 10, 'v7'),
          valu('v_lshl_add_u32', v(vXA), 'v4', 4, 'v7'))
    for q in range(4): B.add(valu('v_mov_b32', v(vOnes+q), '0x3f803f80'))
    B.add(raw("s_waitcnt lgkmcnt(0)", 'misc'))
    B.add(salu('s_cmp_eq_u32', 's5', 0),
          salu('s_cselect_b64', s(sX, 2), 's[36:37]', 's[46:47]'),
          salu('s_cselect_b64', s(sK, 2), 's[38:39]', 's[48:49]'),
          salu('s_cselect_b64', s(sV, 2), 's[40:41]', 's[50:51]'),
          salu('s_cselect_b64', s(sW, 2), 's[42:43]', 's[52:53]'))
    B.add(salu('s_lshl_b32', s(sT0), 's6', 18),
          salu('s_add_u32', s(sX), s(sX), s(sT0)), salu('s_addc_u32', s(sX+1), s(sX+1), 0),
          salu('s_mov_b32', s(sX+2), 262144), salu('s_mov_b32', s(sX+3), '0x00020000'),
          salu('s_lshl_b32', s(sT0), 's7', 9),
          salu('s_add_u32', s(sW), s(sW), s(sT0)), salu('s_addc_u32', s(sW+1), s(sW+1), 0),
          salu('s_sub_u32', s(sW+2), 4194304, s(sT0)), salu('s_mov_b32', s(sW+3), '0x00020000'),
          salu('s_lshl_b32', s(sT0), 's6', 4), salu('s_add_u32', s(sT0), s(sT0), 's7'), salu('s_lshl_b32', s(sT0), s(sT0), 19),
          salu('s_add_u32', s(sK), s(sK), s(sT0)), salu('s_addc_u32', s(sK+1), s(sK+1), 0),
          salu('s_mov_b32', s(sK+2), 524288), salu('s_mov_b32', s(sK+3), '0x00020000'),
          salu('s_add_u32', s(sV), s(sV), s(sT0)), salu('s_addc_u32', s(sV+1), s(sV+1), 0),
          salu('s_mov_b32', s(sV+2), 524288), salu('s_mov_b32', s(sV+3), '0x00020000'),
          salu('s_lshl_b32', s(sT0), 's5', 3), salu('s_add_u32', s(sT0), s(sT0), 's6'), salu('s_lshl_b32', s(sT0), s(sT0), 21),
          salu('s_add_u32', s(sO), 's60', s(sT0)), salu('s_addc_u32', s(sO+1), 's61', 0),
          salu('s_mov_b32', s(sO+2), 2097152), salu('s_mov_b32', s(sO+3), '0x00020000'),
          salu('s_lshl_b32', s(sOoff), 's7', 13),
          salu('s_mov_b32', s(sC), hex(SCALE)), salu('s_mov_b32', s(sC+1), hex(SCALE)),
          salu('s_mov_b32', s(sThr), '0x5f800000'),
          salu('s_mov_b32', s(sItem), 0), salu('s_mov_b32', s(sSlot), SLOT))
    for j in range(4): B.add(salu('s_mov_b32', s(sJ+j), 16384*j))
    return B

def xload(kg, j, ks):
    d = vX + (kg % 2)*64 + (j*4+ks)*4
    return bload('buffer_load_dwordx4', v(d, 4), v(vXA), s(sX, 4), s(sJ+j), 256*kg + 64*ks, tag=('X', kg))
def wdma(c, m):
    kg, dq = divmod(c, 4)
    return [salu('s_add_u32', 'm0', s(sW4k), WBASE + SLOT*(c % 4) + 1024*m),
            salu('s_mov_b32', s(sT0 + (m & 1)), kg*128*8192 + m*65536 + dq*128)], \
           bdma(v(vWD), s(sW, 4), s(sT0 + (m & 1)), 0, tag=('W', c))
def kv_static(kind, n):
    if kind == 'K':
        setup = [salu('s_add_u32', 'm0', s(sW4k), KBASE + SLOT*(n % NSL)), salu('s_mov_b32', s(sT2), n*SLOT)]
        return setup, [bdma(v(vKD+m), s(sK, 4), s(sT2), 1024*m, tag=('K', n), flags=OPT['kv_flags']) for m in range(4)]
    setup = [salu('s_add_u32', 'm0', s(sW4k), VBASE + SLOT*((n+2) % NSL)), salu('s_mov_b32', s(sT2), n*SLOT)]
    return setup, [bdma(v(vVD+(m & 1)), s(sV, 4), s(sT2), 1024*m, tag=('V', n), flags=OPT['kv_flags']) for m in range(4)]
def wread(T, n):
    c, tp = divmod(T, 4); sl, e = divmod(tp, 2); ks, hh = divmod(n, 2)
    d = vWf + (T % 2)*16 + ks*4 + hh*2
    return dsr('ds_read_b64_tr_b16', v(d, 2), v(vWA+sl), SLOT*(c % 4) + 4096*ks + 512*hh + 8*e)

def k1_qproj():
    pre = Block('qpre')
    for j in range(4):
        for ks in range(4): pre.add(xload(0, j, ks))
    for c in range(4):
        for m in range(4):
            su, d = wdma(c, m); pre.add(su, d)
    for kind, n in (('K', 0), ('V', 0), ('K', 1)):
        su, ds_ = kv_static(kind, n); pre.add(su, ds_)
    pre.add(waitvm(lambda ctx: [('X', 0), ('W', 0)]), barrier())
    pre.add(stamp(1))
    for n in range(8): pre.add(wread(0, n))
    pre.add(waitlg(R('v', vWf, 8)))
    S = Sched()
    for T in range(64):
        c, tp = divmod(T, 4); kg, dq = divmod(c, 4); sl, e = divmod(tp, 2)
        head = dq >> 1; ss = 2*(dq & 1) + sl
        for j in range(4):
            acc = a(128*head + ((j*4+ss)*2+e)*4, 4)
            for ks in range(4):
                S.add_mfma(mfma(acc, v(vWf + (T % 2)*16 + ks*4, 4), v(vX + (kg % 2)*64 + (j*4+ks)*4, 4),
                                '0' if (kg == 0 and ks == 0) else acc))
        if T + 1 < 64:
            for n in range(8): S.put(16*T + 4 + n, wread(T+1, n), 'mem')
            S.put(16*T + 15, waitlg(R('v', vWf + ((T+1) % 2)*16, 8)), 'free')
        S.put(16*T + 1, waitlg(R('v', vWf + (T % 2)*16 + 8, 8)), 'free')
    def slots_from(g0):
        g = g0
        while True:
            if g % 16 in (12, 14, 0, 2): yield g
            g += 1
    extra = {0: [('V', 1)], 1: [('K', 2)], 2: [('V', 2)], 12: [('K', 3)], 13: [('K', 4)], 14: [('V', 3)]}
    for c in range(16):
        kg, dq = divmod(c, 4)
        tags = [('W', c+1)] if c < 15 else [('K', 0)]
        if dq == 3 and kg < 3: tags.append(('X', kg+1))
        S.put(64*c + 51, waitvm((lambda t: lambda ctx: t)(tags)), 'free')
        S.put(64*c + 51, barrier(), 'free')
        sl_ = slots_from(64*c + 53)
        if c + 4 < 16:
            for m in range(4):
                g = next(sl_); su, d = wdma(c+4, m)
                S.put(g-1, su[0], 'free'); S.put(g, su[1], 'free'); S.put(g, d, 'mem')
        for kind, n in extra.get(c, []):
            su, ds_ = kv_static(kind, n)
            for m, d in enumerate(ds_):
                g = next(sl_)
                if m == 0: S.put(g-1, su[0], 'free'); S.put(g, su[1], 'free')
                S.put(g, d, 'mem')
    for kg in range(3):
        gs = [256*kg + 16*T + r for T in range(8) for r in (13, 3)]
        for n, (j, ks) in enumerate((j, ks) for j in range(4) for ks in range(4)):
            S.put(gs[n], xload(kg+1, j, ks), 'mem')
    body = Block('qproj', S.flatten(0, 1024))
    cv = Block('qcvt')
    cv.add(stamp(2))
    for q in range(4): cv.add(dsr('ds_read_b128', v(vKf+4*q, 4), v(vKA+q), 0))
    tmp = [48, 56, 80, 88]
    for head in (1, 0):
        for f in range(16):
            t = tmp[f % 4]
            for r in range(8): cv.add(valu('v_accvgpr_read_b32', v(t+r), a(128*head + 8*f + r)))
            for r in range(0, 8, 2): cv.add(valu('v_pk_mul_f32', v(t+r, 2), v(t+r, 2), s(sC, 2)))
            for r in range(4):
                d = vQ + 4*f + r if head == 0 else t + r
                cv.add(valu('v_cvt_pk_bf16_f32', v(d), v(t+2*r), v(t+2*r+1)))
            if head == 1:
                for r in range(4): cv.add(valu('v_accvgpr_write_b32', a(aQ2 + 4*f + r), v(t+r)))
    cv.add(salu('s_mov_b32', s(sKoff), 5*SLOT), salu('s_mov_b32', s(sVoff), 4*SLOT),
           salu('s_add_u32', s(sKm0), s(sW4k), KBASE), salu('s_add_u32', s(sVm0), s(sW4k), VBASE + SLOT),
           salu('s_mov_b32', s(sKrs), 0), salu('s_mov_b32', s(sVrs), SLOT))
    return pre, body, cv

def qk(j, q, first_c, kbuf=vKf):
    D = v(vS + 4*j, 4)
    return mfma(D, v(kbuf + 4*q, 4), v(vQ + (4*j+q)*4, 4), first_c if q == 0 else D)
def Preg(par, u, j): return vP + par*32 + (u*4+j)*4
def sm_ops(par, t, j):
    ex = [valu('v_exp_f32', v(vS+4*j+r), v(vS+4*j+r)) for r in range(4)]
    p = Preg(par, t//2, j) + (t % 2)*2
    cv = [valu('v_cvt_pk_bf16_f32', v(p+h), v(vS+4*j+2*h), v(vS+4*j+2*h+1)) for h in range(2)]
    return ex, cv
def kread(t, q, kbuf=vKf): return dsr('ds_read_b128', v(kbuf+4*q, 4), v(vKA+q), 4096*t)
def vread(dt, u, e):
    return dsr('ds_read_b64_tr_b16', v(vVf + (dt % 2)*8 + u*4 + e*2, 2), v(vVA+dt), 8192*u + 4096*e)
def ring_read_adv(srs, sd):
    return [salu('s_add_u32', s(srs), s(srs), SLOT), salu('s_cmp_eq_u32', s(srs), NSL*SLOT),
            salu('s_cselect_b32', s(sd), hex((SLOT - NSL*SLOT) & 0xffffffff), s(sSlot)), salu('s_cselect_b32', s(srs), 0, s(srs))]
def ring_dma_adv(sm0, soff, lim):
    return [salu('s_add_u32', s(soff), s(soff), SLOT), salu('s_add_u32', s(sm0), s(sm0), SLOT),
            salu('s_cmp_ge_u32', s(sm0), lim), salu('s_cselect_b32', s(sT0), NSL*SLOT, 0), salu('s_sub_u32', s(sm0), s(sm0), s(sT0))]
def kv_dyn(kind, m):
    if kind == 'K':
        return bdma(v(vKD+m), s(sK, 4), s(sKoff), 1024*m, tag=lambda i: ('K', i+4), flags=OPT['kv_flags'])
    return bdma(v(vVD+(m & 1)), s(sV, 4), s(sVoff), 1024*m, tag=lambda i: ('V', i+3), flags=OPT['kv_flags'])

def k1_m0():
    B = Block('m0')
    B.add(waitlg(R('v', vKf, 16)))
    for j in range(4):
        for q in range(4): B.add(qk(j, q, '0'))
    m = vT; c = vT+4
    for j in range(4): B.add(valu('v_max3_f32', v(m+j), v(vS+4*j), v(vS+4*j+1), v(vS+4*j+2)))
    for j in range(4): B.add(valu('v_max_f32', v(m+j), v(m+j), v(vS+4*j+3)))
    for op in ('v_permlane16_swap_b32', 'v_permlane32_swap_b32'):
        for j in range(4): B.add(valu('v_mov_b32', v(c+j), v(m+j)))
        for j in range(4): B.add(valu(op, v(m+j), v(c+j)))
        for j in range(4): B.add(valu('v_max_f32', v(m+j), v(m+j), v(c+j)))
    for j in range(4):
        for r in range(4): B.add(valu('v_sub_f32', v(vNeg+4*j+r), 0, v(m+j)))
    return B

def head_ops(S, par_prev):
    ex, cv = sm_ops(par_prev, 3, 3)
    S.put(0, ex[1], 'valu'); S.put(1, cv[0], 'valu'); S.put(2, ex[2], 'valu'); S.put(4, ex[3], 'valu'); S.put(5, cv[1], 'valu')

def k1_iter0():
    S = Sched()
    bufB = vP + 32
    for t in range(4):
        kb = vKf if t % 2 == 0 else bufB
        for j in range(4):
            for q in range(4): S.add_mfma(qk(j, q, v(vNeg+4*j, 4), kb))
        if t < 3:
            nb = bufB if t % 2 == 0 else vKf
            for q in range(4): S.put(16*t + 1 + 2*q, kread(t+1, q, nb), 'mem')
            S.put(16*t + 15, waitlg(R('v', nb, 16)), 'free')
    for t in range(4):
        for j in range(4):
            ex, cv = sm_ops(0, t, j)
            g0 = 16*t + 4*j + 7
            if (t, j) == (3, 3):
                S.put(63, ex[0], 'valu'); continue
            seq = [(g0, ex[0]), (g0+1, ex[1]), (g0+2, ex[2]), (g0+2, cv[0]), (g0+3, ex[3]), (g0+4, cv[1])]
            for g, i in seq: S.put(min(g, 63), i, 'valu')
    for n, i in enumerate(ring_read_adv(sKrs, sKd)): S.put(2+n, i, 'free')
    for n, i in enumerate(ring_read_adv(sVrs, sVd)): S.put(8+n, i, 'free')
    for dt in range(8): S.put(16 + 2*dt, valu('v_add_u32', v(vVA+dt), s(sVd), v(vVA+dt)), 'valu')
    for q in range(4): S.put(42 + q, valu('v_add_u32', v(vKA+q), s(sKd), v(vKA+q)), 'valu')
    S.put(49, waitvm(lambda i: [('K', i+1), ('V', i)]), 'free'); S.put(49, barrier(), 'free')
    for q in range(4): S.put(51 + 2*q, kread(0, q), 'mem')
    S.put(62, waitlg(R('v', vKf, 16)), 'free') if False else None
    for n, (u, e) in enumerate(((0, 0), (0, 1), (1, 0))): S.put(59 + 2*n if n < 2 else 62, vread(0, u, e), 'mem')
    S.put(63, waitlg(R('v', vKf, 16)), 'free')
    return Block('iter0', S.flatten(0, 64))

def pv_group(S, p, par_prev, first):
    for dt in (2*p, 2*p+1):
        for j in range(4):
            D = a(aO + (dt*4+j)*4, 4)
            for u in range(2):
                S.add_mfma(mfma(D, v(vVf + (dt % 2)*8 + u*4, 4), v(Preg(par_prev, u, j), 4), '0' if (first and u == 0) else D))
    D = v(vL + 4*p, 4)
    for u in range(2):
        S.add_mfma(mfma(D, v(vOnes, 4), v(Preg(par_prev, u, p), 4), '0' if (first and u == 0) else D))

def k1_body(name, par, first=False, loop_end=None):
    S = Sched()
    for p in range(4):
        for j in range(4):
            for q in range(4): S.add_mfma(qk(j, q, v(vNeg+4*j, 4)))
        pv_group(S, p, 1-par, first)
    head_ops(S, 1-par)
    for t in range(4):
        b = 34*t
        for j in range(4):
            ex, cv = sm_ops(par, t, j)
            g0 = b + 8 + 8*j
            for g, i in [(g0, ex[0]), (g0+2, ex[1]), (g0+3, cv[0]), (g0+4, ex[2]), (g0+6, ex[3]), (g0+7, cv[1])]:
                if g < 136: S.put(g, i, 'valu')
        for q in range(4): S.put(b + 19 + 2*q, kread((t+1) % 4, q), 'mem')
        S.put(b + 32, waitlg(R('v', vKf, 16)), 'free')
        S.put(b + 1, vread(2*t, 1, 1), 'mem')
        for n, (u, e) in enumerate(((0, 0), (0, 1), (1, 0), (1, 1))): S.put(b + 3 + 2*n, vread(2*t+1, u, e), 'mem')
        S.put(b + 14, waitlg(R('v', vVf, 16)), 'free')
        for n, (u, e) in enumerate(((0, 0), (0, 1), (1, 0))): S.put(b + 29 + 2*n, vread((2*t+2) % 8, u, e), 'mem')
        for n in range(2): S.put(b + 21 + 4*n, valu('v_add_u32', v(vVA+2*t+n), s(sVd), v(vVA+2*t+n)), 'valu')
        kind = 'K' if t < 2 else 'V'
        for n in range(2): S.put(b + 11 + 16*n, kv_dyn(kind, 2*(t % 2) + n), 'mem')
    for n, g in enumerate((3, 7, 9, 13)): S.put(102 + g, valu('v_add_u32', v(vKA+n), s(sKd), v(vKA+n)), 'valu')
    S.put(10, salu('s_mov_b32', 'm0', s(sKm0)), 'free')
    S.put(68 + 10, salu('s_mov_b32', 'm0', s(sVm0)), 'free')
    for n, i in enumerate(ring_read_adv(sVrs, sVd)): S.put(2 + 2*n, i, 'free')
    for n, i in enumerate(ring_read_adv(sKrs, sKd)): S.put(36 + 2*n, i, 'free')
    for n, i in enumerate(ring_dma_adv(sKm0, sKoff, NSL*SLOT)): S.put(64 + 2*n - (0 if n < 1 else 0) + (24 if False else 0), i, 'free') if False else None
    for n, i in enumerate(ring_dma_adv(sKm0, sKoff, NSL*SLOT)): S.put(84 + 2*n, i, 'free')
    S.put(102 + 17, waitvm(lambda i: [('K', i+1), ('V', i)]), 'free'); S.put(102 + 17, barrier(), 'free')
    adv = ring_dma_adv(sVm0, sVoff, 2*NSL*SLOT)
    for n, i in enumerate(adv): S.put(102 + 28 + n, i, 'free')
    ins = S.flatten(0, 136)
    B = Block(name, ins)
    if loop_end:
        B.add(salu('s_sub_u32', s(sCnt), s(sCnt), 1), raw(f"s_cbranch_scc0 {loop_end}", 'branch', r=['scc']))
    B.sched = S
    return B

def k1_drain():
    S = Sched()
    for p in range(4): pv_group(S, p, 1, False)
    head_ops(S, 1)
    B = Block('drain')
    B.add(vread(0, 1, 1))
    for (u, e) in ((0, 0), (0, 1), (1, 0), (1, 1)): B.add(vread(1, u, e))
    B.add(waitlg(R('v', vVf, 8)))
    for p in range(4):
        b = 18*p
        S.put(b + 7, waitlg(R('v', vVf + 8, 8)), 'free')
        if p < 3:
            for n, (u, e) in enumerate(((0, 0), (0, 1), (1, 0), (1, 1))):
                S.put(b + 8 + n, vread(2*p+2, u, e), 'mem')
                S.put(b + 16 + n, vread(2*p+3, u, e), 'mem')
            S.put(b + 17, waitlg(R('v', vVf, 8)), 'free')
    S.put(12, salu('s_mov_b32', 'm0', s(sKm0)), 'free')
    for m in range(4): S.put(13 + 6*m if m else 13, kv_dyn('K', m), 'mem') if False else None
    for m, g in enumerate((13, 15, 23, 25)): S.put(g, kv_dyn('K', m), 'mem')
    S.put(30, salu('s_mov_b32', 'm0', s(sVm0)), 'free')
    for m, g in enumerate((31, 33, 41, 43)): S.put(g, kv_dyn('V', m), 'mem')
    for n, i in enumerate(ring_dma_adv(sKm0, sKoff, NSL*SLOT)): S.put(46 + n, i, 'free')
    for n, i in enumerate(ring_dma_adv(sVm0, sVoff, 2*NSL*SLOT)): S.put(56 + n, i, 'free')
    B.add(S.flatten(0, 72))
    return B

def k1_check():
    B = Block('chk')
    B.add(valu('v_add_f32', v(vT), v(vL), v(vL+4)), valu('v_add_f32', v(vT+1), v(vL+8), v(vL+12)),
          valu('v_add_f32', v(vT), v(vT), v(vT+1)),
          valu('v_cmp_nge_f32', 'vcc', s(sThr), v(vT)),
          salu('s_cmp_lg_u64', 'vcc', 0),
          raw("s_cbranch_scc1 L_slow", 'branch', r=['scc']))
    return B

def k1_epi():
    B = Block('epi')
    rl = vT
    for j in range(4): B.add(valu('v_rcp_f32', v(rl+2*j), v(vL+4*j)))
    n = 0
    for j in range(4):
        B.add(salu('s_add_u32', s(sT0 + (j & 1)), s(sOoff), 131072*j))
        for sp in range(4):
            t = vP + (n % 4)*8; d = vP + 32 + (n % 8)*4; n += 1
            for h in range(2):
                for r in range(4): B.add(valu('v_accvgpr_read_b32', v(t+4*h+r), a(aO + ((2*sp+h)*4+j)*4 + r)))
            for r in range(0, 8, 2): B.add(valu('v_pk_mul_f32', v(t+r, 2), v(t+r, 2), v(rl+2*j, 2), extra='op_sel_hi:[1,0]'))
            for r in range(4): B.add(valu('v_cvt_pk_bf16_f32', v(d+r), v(t+2*r), v(t+2*r+1)))
            B.add(bstore('buffer_store_dwordx4', v(d, 4), v(vOst), s(sO, 4), s(sT0 + (j & 1)), 1024*sp, tag='O'))
    return B

def k1_next():
    B = Block('next')
    B.add(salu('s_cmp_lg_u32', s(sItem), 0), raw("s_cbranch_scc1 L_k1_fin", 'branch', r=['scc']))
    for r in range(64): B.add(valu('v_accvgpr_read_b32', v(vQ+r), a(aQ2+r)))
    B.add(salu('s_mov_b32', s(sItem), 1), salu('s_add_u32', s(sOoff), s(sOoff), 4096))
    B.add(raw("s_branch L_item", 'branch'))
    return B

def k1_slow():
    kf, Sx, Pp = vP, vP+32, vS
    m, l, al, t = vNeg, vNeg+4, vNeg+8, vNeg+12
    ak, av = vT+8, vT+9
    pk = vVf
    pre = Block('slow_pre')
    pre.add(valu('v_and_b32', 'v1', 63, 'v0'), valu('v_and_b32', 'v3', 15, 'v0'), valu('v_lshrrev_b32', 'v4', 4, 'v1'),
            valu('v_lshlrev_b32', v(ak), 8, 'v3'), valu('v_lshl_add_u32', v(ak), 'v4', 4, v(ak)),
            valu('v_lshlrev_b32', v(av), 10, 'v4'), valu('v_lshl_add_u32', v(av), 'v3', 1, v(av)))
    for j in range(4): pre.add(valu('v_mov_b32', v(m+j), '0xff800000'), valu('v_mov_b32', v(l+j), 0))
    for r in range(128): pre.add(valu('v_accvgpr_write_b32', a(aO+r), 0))
    pre.add(salu('s_lshl_b32', s(sT0), s(sItem), 18), salu('s_add_u32', s(sT1), s(sT0), 4096), salu('s_mov_b32', s(sCnt), 31))
    L = Block('slow_loop')
    for tt in range(2):
        for q in range(4):
            L.add(bload('buffer_load_dwordx4', v(kf+(tt*4+q)*4, 4), v(ak), s(sK, 4), s(sT0+tt), 64*q))
    L.add(waitvm0())
    for tt in range(2):
        for j in range(4):
            D = v(Sx + (j*2+tt)*4, 4)
            for q in range(4): L.add(mfma(D, v(kf+(tt*4+q)*4, 4), v(vQ+(4*j+q)*4, 4), '0' if q == 0 else D))
    for j in range(4):
        x = Sx + 8*j
        L.add(valu('v_max3_f32', v(t), v(x), v(x+1), v(x+2)), valu('v_max3_f32', v(t), v(t), v(x+3), v(x+4)),
              valu('v_max3_f32', v(t), v(t), v(x+5), v(x+6)), valu('v_max3_f32', v(t), v(t), v(x+7), v(m+j)))
        for op in ('v_permlane16_swap_b32', 'v_permlane32_swap_b32'):
            L.add(valu('v_mov_b32', v(t+1), v(t)), valu(op, v(t), v(t+1)), valu('v_max_f32', v(t), v(t), v(t+1)))
        L.add(valu('v_sub_f32', v(al+j), v(m+j), v(t)), valu('v_exp_f32', v(al+j), v(al+j)), valu('v_mov_b32', v(m+j), v(t)))
        L.add(valu('v_mul_f32', v(l+j), v(l+j), v(al+j)))
        for r in range(8):
            L.add(valu('v_sub_f32', v(x+r), v(x+r), v(t)), valu('v_exp_f32', v(x+r), v(x+r)))
        for r in range(8): L.add(valu('v_add_f32', v(l+j), v(l+j), v(x+r)))
        for r in range(4): L.add(valu('v_cvt_pk_bf16_f32', v(Pp+4*j+r), v(x+2*r), v(x+2*r+1)))
    for half in range(2):
        for d4 in range(4):
            dt = half*4 + d4
            for jj in range(8):
                L.add(bload('buffer_load_ushort', v(kf+d4*8+jj), v(av), s(sV, 4), s(sT0+(jj//4)), (jj % 4)*256 + 32*dt))
        if half == 0:
            for dt in range(8):
                for j in range(4):
                    for r in range(4):
                        x = aO + (dt*4+j)*4 + r
                        L.add(valu('v_accvgpr_read_b32', v(t+r), a(x)))
                    for r in range(4): L.add(valu('v_mul_f32', v(t+r), v(t+r), v(al+j)))
                    for r in range(4):
                        x = aO + (dt*4+j)*4 + r
                        L.add(valu('v_accvgpr_write_b32', a(x), v(t+r)))
        L.add(waitvm0())
        for d4 in range(4):
            dt = half*4 + d4
            for r in range(4): L.add(valu('v_lshl_or_b32', v(pk+4*d4+r), v(kf+d4*8+2*r+1), 16, v(kf+d4*8+2*r)))
        for d4 in range(4):
            dt = half*4 + d4
            for j in range(4):
                D = a(aO + (dt*4+j)*4, 4)
                L.add(mfma(D, v(pk+4*d4, 4), v(Pp+4*j, 4), D))
    L.add(salu('s_add_u32', s(sT0), s(sT0), 8192), salu('s_add_u32', s(sT1), s(sT1), 8192),
          salu('s_sub_u32', s(sCnt), s(sCnt), 1), raw("s_cbranch_scc0 L_slow_loop", 'branch', r=['scc']))
    post = Block('slow_post')
    for j in range(4):
        for op in ('v_permlane16_swap_b32', 'v_permlane32_swap_b32'):
            post.add(valu('v_mov_b32', v(t), v(l+j)), valu(op, v(l+j), v(t)), valu('v_add_f32', v(l+j), v(l+j), v(t)))
        post.add(valu('v_mov_b32', v(vL+4*j), v(l+j)))
    post.add(nop(7), raw("s_branch L_epi", 'branch'))
    return pre, L, post

def gen_k1():
    pro = k1_prologue(); qpre, qproj, qcvt = k1_qproj()
    m0 = k1_m0(); it0 = k1_iter0()
    b1 = k1_body('b1f', 1, first=True); be = k1_body('beven', 0); bo = k1_body('bodd', 1, loop_end='L_loop')
    setc = Block('setc', [salu('s_mov_b32', s(sCnt), 6)])
    dr = k1_drain(); chk = k1_check(); epi = k1_epi(); nx = k1_next()
    spre, sloop, spost = k1_slow()
    def item(base, slow):
        t = [(m0, base), (it0, base), (b1, base+1), (setc, 0)]
        for i in range(2, 16, 2): t += [(be, base+i), (bo, base+i+1)]
        t += [(dr, base+16), (chk, 0)]
        if slow: t += [(spre, 0), (sloop, 0), (sloop, 0), (spost, 0)]
        t += [(epi, 0), (nx, 0)]
        return t
    head = [(pro, 0), (qpre, 0), (qproj, 0), (qcvt, 0)]
    tr_fast = head + item(0, False) + item(16, False)
    tr_slow = head + item(0, True) + item(16, True)
    resolve_waits(tr_fast)
    fix = ('pro', 'qpre', 'qcvt', 'm0', 'chk', 'epi', 'next', 'slow_pre', 'slow_loop', 'slow_post', 'iter0', 'drain')
    for tr in (tr_fast, tr_slow):
        e = hazards(tr, fix)
        if e: print("\n".join(e[:20])); raise SystemExit("hazards in k1")
    for tr in (tr_fast, tr_slow):
        e = check_waits(tr, verbose=True)
        if e: print("\n".join(e[:20])); raise SystemExit("wait errors in k1")
    over = [(g, be.sched.load(g)) for g in range(136) if be.sched.load(g)[1] > 2 or be.sched.load(g)[0] > 1]
    print("k1 body over-full gaps:", over)
    out = []
    out += [pro.text(), qpre.text(), qproj.text(), qcvt.text()]
    out += ["L_item:", m0.text(), it0.text(), b1.text(), setc.text(), ".p2align 6", "L_loop:", be.text(), bo.text(), dr.text(), chk.text(),
            "L_epi:", epi.text(), nx.text()]
    out += ["L_slow:", spre.text(), "L_slow_loop:", sloop.text(), spost.text()]
    out += ["L_k1_fin:"]
    if OPT['stamps']:
        out += [k1_stamp_out()]
    out += ["L_k1_end:", "    s_endpgm"]
    return "\n".join(out)

def k1_stamp_out():
    return ""

def gen_k2():
    sA, sB, sOut = 8, 12, 16
    vB, vAA, vDW, vBO, vOut = 32, 8, 12, 13, 14
    aA = 128
    sQ = 40
    pro = Block('k2pro')
    pro.add(raw("s_cmp_ge_u32 s2, 256", 'salu'), raw("s_cbranch_scc1 L_k2_end", 'branch'))
    pro.add(raw("s_load_dwordx2 s[36:37], s[0:1], 32"), raw("s_load_dwordx2 s[38:39], s[0:1], 72"),
            raw("s_load_dwordx2 s[56:57], s[0:1], 80"), raw("s_load_dwordx2 s[60:61], s[0:1], 96"))
    pro.add(valu('v_and_b32', 'v1', 63, 'v0'), valu('v_lshrrev_b32', 'v2', 6, 'v0'), valu('v_and_b32', 'v3', 15, 'v0'),
            valu('v_readfirstlane_b32', s(sWv), 'v2'),
            valu('v_lshrrev_b32', 'v4', 4, 'v1'), valu('v_bfe_u32', 'v5', 'v1', 2, 2), valu('v_and_b32', 'v6', 3, 'v1'))
    pro.add(salu('s_and_b32', 's3', 's2', 7), salu('s_lshr_b32', 's4', 's2', 3),
            salu('s_lshr_b32', 's5', 's3', 2),
            salu('s_and_b32', 's6', 's3', 3), salu('s_lshl_b32', 's6', 's6', 2), salu('s_and_b32', 's7', 's4', 3),
            salu('s_add_u32', 's6', 's6', 's7'),
            salu('s_lshr_b32', 's7', 's4', 2))
    WL = 24576
    pro.add(valu('v_lshl_add_u32', 'v7', 'v4', 2, 'v5'),
            valu('v_bfe_u32', 'v16', 'v7', 1, 2), valu('v_lshlrev_b32', 'v16', 5, 'v16'),
            valu('v_lshl_add_u32', 'v16', 'v7', 7, 'v16'), valu('v_lshl_add_u32', 'v16', 'v6', 3, 'v16'),
            valu('v_mul_u32_u24', 'v17', WL, 'v2'))
    for nt in range(4):
        pro.add(valu('v_xor_b32', v(vAA+nt), 32*nt, 'v16'))
    for nt in range(4):
        pro.add(valu('v_add_u32', v(vAA+nt), v(vAA+nt), 'v17'))
    pro.add(valu('v_lshrrev_b32', 'v7', 3, 'v1'), valu('v_bfe_u32', 'v16', 'v1', 4, 2), valu('v_lshlrev_b32', 'v16', 1, 'v16'),
            valu('v_and_b32', 'v17', 7, 'v1'), valu('v_xor_b32', 'v16', 'v16', 'v17'),
            valu('v_lshl_add_u32', 'v7', 'v2', 10, 'v7'), valu('v_lshlrev_b32', 'v7', 10, 'v7'),
            valu('v_lshl_add_u32', v(vDW), 'v16', 4, 'v7'))
    pro.add(valu('v_lshlrev_b32', 'v7', 15, 'v2'), valu('v_lshl_add_u32', v(vBO), 'v1', 4, 'v7'))
    pro.add(valu('v_lshl_add_u32', 'v7', 'v2', 5, 'v3'), valu('v_lshlrev_b32', 'v7', 11, 'v7'),
            valu('v_lshl_add_u32', v(vOut), 'v4', 3, 'v7'))
    pro.add(salu('s_mul_i32', s(sW4k), s(sWv), WL))
    pro.add(raw("s_waitcnt lgkmcnt(0)", 'misc'))
    pro.add(salu('s_cmp_eq_u32', 's5', 0), salu('s_cselect_b64', s(sA, 2), 's[36:37]', 's[38:39]'),
            salu('s_lshl_b32', s(sT0), 's7', 7),
            salu('s_add_u32', s(sA), s(sA), s(sT0)), salu('s_addc_u32', s(sA+1), s(sA+1), 0),
            salu('s_sub_u32', s(sA+2), 4194304, s(sT0)), salu('s_mov_b32', s(sA+3), '0x00020000'),
            salu('s_lshl_b32', s(sT0), 's5', 4), salu('s_add_u32', s(sT0), s(sT0), 's6'), salu('s_lshl_b32', s(sT0), s(sT0), 20),
            salu('s_add_u32', s(sB), 's60', s(sT0)), salu('s_addc_u32', s(sB+1), 's61', 0),
            salu('s_mov_b32', s(sB+2), 1048576), salu('s_mov_b32', s(sB+3), '0x00020000'),
            salu('s_lshl_b32', s(sT0), 's6', 18), salu('s_lshl_b32', s(sT1), 's5', 10), salu('s_add_u32', s(sT0), s(sT0), s(sT1)),
            salu('s_lshl_b32', s(sT1), 's7', 7), salu('s_add_u32', s(sT0), s(sT0), s(sT1)),
            salu('s_add_u32', s(sOut), 's56', s(sT0)), salu('s_addc_u32', s(sOut+1), 's57', 0),
            salu('s_sub_u32', s(sOut+2), 4194304, s(sT0)), salu('s_mov_b32', s(sOut+3), '0x00020000'))
    NST = 16
    def bl(st, jq, u):
        d = vB + (st % 3)*64 + (jq*2+u)*4
        return bload('buffer_load_dwordx4', v(d, 4), v(vBO), s(sB, 4), s(sQ+jq), (2*st+u)*1024 % 4096, tag=('B', st))
    def q_setup(st):
        return [salu('s_mov_b32', s(sQ+jq), jq*131072 + (st//2)*4096) for jq in range(8)]
    def ad(st, m):
        return [salu('s_add_u32', 'm0', s(sW4k), (st % 3)*8192 + 1024*m),
                salu('s_mov_b32', s(sT0 + (m & 1)), (st*64 + m*8)*1024)], \
               bdma(v(vDW), s(sA, 4), s(sT0 + (m & 1)), 0, tag=('A', st))
    def ar(st, nt, n):
        u, e = divmod(n, 2)
        d = aA + (st % 2)*32 + (nt*2+u)*4 + e*2
        return dsr('ds_read_b64_tr_b16', a(d, 2), v(vAA+nt), (st % 3)*8192 + u*4096 + e*2048)
    for st in range(2):
        for m in range(8):
            su, d = ad(st, m); pro.add(su, d)
        if st % 2 == 0: pro.add(q_setup(st))
        for jq in range(8):
            for u in range(2): pro.add(bl(st, jq, u))
    pro.add(waitvm(lambda c: [('A', 0)]))
    for nt in range(4):
        for n in range(4): pro.add(ar(0, nt, n))
        if nt == 2: pro.add(waitlg(R('a', aA, 8)))
    pro.add(waitvm(lambda c: [('B', 0)]), waitlg(R('a', aA, 32)))
    S = Sched()
    for st in range(NST):
        for nt in range(4):
            for jq in range(8):
                D = a((nt*8+jq)*4, 4)
                for u in range(2):
                    S.add_mfma(mfma(D, a(aA + (st % 2)*32 + (nt*2+u)*4, 4), v(vB + (st % 3)*64 + (jq*2+u)*4, 4),
                                    '0' if (st == 0 and u == 0) else D))
        b = 64*st
        if st + 2 < NST:
            g = b
            for m in range(8):
                su, d = ad(st+2, m)
                S.put(g, su[0], 'free'); S.put(g+1, su[1], 'free'); S.put(g+1, d, 'mem'); g += 2
            if (st+2) % 2 == 0:
                for n, i in enumerate(q_setup(st+2)): S.put(b + 16 + n//2*0 + n, i, 'free') if False else None
                for n, i in enumerate(q_setup(st+2)): S.put(b + 16 + n//2, i, 'free')
            for n, (jq, u) in enumerate((jq, u) for jq in range(8) for u in range(2)):
                S.put(b + 21 + 2*n if n < 8 else b + 21 + 2*n, bl(st+2, jq, u), 'mem')
        if st + 1 < NST:
            S.put(b + 30, waitvm((lambda x: lambda c: [('A', x)])(st+1)), 'free')
            for n in range(16): S.put(b + 30 + 2*n, ar(st+1, n//4, n % 4), 'mem')
            S.put(b + 54, waitlg(R('a', aA + ((st+1) % 2)*32, 8)), 'free')
            S.put(b + 63, waitvm((lambda x: lambda c: [('B', x)])(st+1)), 'free')
            S.put(b + 63, waitlg(R('a', aA + ((st+1) % 2)*32, 32)), 'free')
    body = Block('k2body', S.flatten(0, 64*NST))
    ep = Block('k2epi')
    RB = 0
    ep.add(barrier())
    ep.add(valu('v_lshlrev_b32', 'v16', 4, 'v1'), valu('v_lshl_add_u32', 'v17', 'v2', 15, 'v16'))
    for jq in range(8):
        for nt in range(4):
            ep.add(dsw('ds_write_b128', 'v17', a((nt*8+jq)*4, 4), (jq*4+nt)*1024))
            if (jq*4+nt) % 8 == 7: ep.add(waitlg0())
    ep.add(barrier())
    ep.add(valu('v_lshl_add_u32', 'v18', 'v2', 13, 'v16'), valu('v_add_u32', 'v19', 65536, 'v18'))
    for src in range(4):
        for n in range(8):
            ep.add(dsr('ds_read_b128', v(vB + src*32 + n*4, 4), 'v18' if src < 2 else 'v19', (src % 2)*32768 + n*1024))
        ep.add(waitlg0())
    for r in range(32):
        ep.add(valu('v_add_f32', v(vB+r), v(vB+r), v(vB+32+r)), valu('v_add_f32', v(vB+64+r), v(vB+64+r), v(vB+96+r)))
    for r in range(32): ep.add(valu('v_add_f32', v(vB+r), v(vB+r), v(vB+64+r)))
    ep.add(salu('s_mov_b32', s(sT0), 0), salu('s_mov_b32', s(sT1), 16*2048))
    for n in range(8):
        qq, nt = divmod(n, 4)
        d = vB + 128 + 2*n
        ep.add(valu('v_cvt_pk_bf16_f32', v(d), v(vB+4*n), v(vB+4*n+1)), valu('v_cvt_pk_bf16_f32', v(d+1), v(vB+4*n+2), v(vB+4*n+3)))
        ep.add(bstore('buffer_store_dwordx2', v(d, 2), v(vOut), s(sOut, 4), s(sT0+qq), 32*nt))
    tr = [(pro, 0), (body, 0), (ep, 0)]
    resolve_waits(tr)
    e = hazards(tr, ('k2pro', 'k2epi'))
    if e: print("\n".join(e[:20])); raise SystemExit("hazards in k2")
    e = check_waits(tr, verbose=True)
    if e: print("\n".join(e[:20])); raise SystemExit("wait errors in k2")
    return "\n".join([pro.text(), body.text(), ep.text(), "L_k2_end:", "    s_endpgm"])

HEADER = open(os.path.join(os.path.dirname(os.path.abspath(__file__)), "header.txt")).read()

def desc(name):
    return f""".p2align 6
.amdhsa_kernel {name}
  .amdhsa_next_free_vgpr 512
  .amdhsa_next_free_sgpr 102
  .amdhsa_accum_offset 256
  .amdhsa_group_segment_fixed_size 0
  .amdhsa_kernarg_size 104
  .amdhsa_user_sgpr_count 2
  .amdhsa_user_sgpr_kernarg_segment_ptr 1
  .amdhsa_system_sgpr_workgroup_id_x 1
.end_amdhsa_kernel
"""

def main(path):
    k1 = gen_k1(); k2 = gen_k2()
    n1 = NAME + "_kernel"; n2 = "oproj_kernel"
    txt = HEADER
    txt += f"; @launch kernel={n1} grid=(256,1,1) block=(256,1,1) lds=163840\n"
    txt += f"; @launch kernel={n2} grid=(256,1,1) block=(256,1,1) lds=131072\n"
    txt += f""".amdgcn_target "amdgcn-amd-amdhsa--gfx950"
.text
.globl {n1}
.p2align 8
.type {n1},@function
{n1}:
{k1}
.globl {n2}
.p2align 8
.type {n2},@function
{n2}:
{k2}
.section .rodata,"a"
{desc(n1)}{desc(n2)}"""
    open(path, "w").write(txt)

if __name__ == "__main__":
    main(sys.argv[1] if len(sys.argv) > 1 else f"cdna_kernels/{NAME}.s")
```

```python
import sys, os
sys.path.insert(0, os.path.dirname(os.path.abspath(__file__)))
from asmlib import *

NAME = "concat_heads__mha_block_cached__gqa_block_cached__near_ridge"
OPT = dict(kv_flags='nt', w_flags='', x_flags='', o_flags='', a_flags='', b_flags='', t_flags='', t_dist=0, wo_warm=1, stamps=False)

vKA, vVA, vKD, vVD, vOst = 8, 12, 20, 24, 26
vWA, vWD, vXA = 27, 29, 30
vNeg, vS, vKf, vVf, vP, vQ, vOnes, vL = 32, 48, 64, 80, 96, 160, 224, 228
vT = 244
vWf, vX = 64, 96
vXD, vXR = 32, 36
XS = (1, 2, 8, 9)
aO, aQ2 = 0, 128
sK, sV, sW, sX, sO = 8, 12, 16, 20, 24
sWv, sW4k = 28, 29
sKoff, sVoff, sKm0, sVm0 = 30, 31, 32, 33
sKrs, sVrs, sKd, sVd = 34, 35, 64, 65
sT0, sT1, sT2 = 66, 67, 68
sCnt, sItem, sOoff = 69, 70, 71
sC = 62
sThr = 72
sJ = 74
sMask = 78
sSlot = 73
SLOT = 16384
NSL = 5
KBASE, VBASE, WBASE = 0, NSL*SLOT, 3*SLOT
SCALE = 0x3E0293EE
import struct, math
SCALE = struct.unpack('<I', struct.pack('<f', math.log2(math.e)/math.sqrt(128.0)))[0]

def v(b, n=1): return F('v', b, n)
def a(b, n=1): return F('a', b, n)
def s(b, n=1): return F('s', b, n)

def stamp(n):
    if not OPT['stamps']: return []
    if OPT.get('lstamps') and n not in (0, 60): return []
    pre = [raw("s_mov_b32 s99, 0", 'misc'), raw("v_mov_b32 v254, 0", 'misc'), raw("v_mov_b32 v255, 0", 'misc')] if n == 0 else []
    return pre + [raw("s_memtime s[94:95]", 'misc'), raw("s_memrealtime s[96:97]", 'misc'),
            raw("s_mov_b32 s98, m0", 'misc'), raw("s_waitcnt lgkmcnt(0)", 'misc'),
            raw("s_mov_b32 m0, s99", 'misc'), raw("s_nop 3", 'misc'), raw("v_writelane_b32 v254, s94, m0", 'misc'),
            raw("v_writelane_b32 v255, s96, m0", 'misc'), raw("s_add_u32 s99, s99, 1", 'misc'), raw("s_mov_b32 m0, s98", 'misc'), raw("s_nop 1", 'misc')]
def stamp_text(n): return "\n".join("    " + i.t for i in stamp(n))
def stamp_out(region):
    return f"""    s_add_u32 s92, s60, {hex(64*1048576 + region*1048576)}
    s_addc_u32 s93, s61, 0
    s_mov_b32 s8, s92
    s_mov_b32 s9, s93
    s_mov_b32 s10, 1048576
    s_mov_b32 s11, 0x00020000
    s_lshl_b32 s92, s2, 2
    s_add_u32 s92, s92, s28
    s_lshl_b32 s92, s92, 9
    v_and_b32 v1, 63, v0
    v_lshlrev_b32 v1, 3, v1
    buffer_store_dwordx2 v[254:255], v1, s[8:11], s92 offen
"""

def k1_prologue():
    B = Block('pro')
    B.add(raw("s_cmp_ge_u32 s2, 256", 'salu'), raw("s_cbranch_scc1 L_k1_end", 'branch'))
    B.add(stamp(0))
    B.add(raw("s_load_dwordx16 s[36:51], s[0:1], 0"), raw("s_load_dwordx8 s[52:59], s[0:1], 64"),
          raw("s_load_dwordx2 s[60:61], s[0:1], 96"))
    B.add(valu('v_and_b32', 'v1', 63, 'v0'),
          valu('v_lshrrev_b32', 'v2', 6, 'v0'),
          valu('v_and_b32', 'v3', 15, 'v0'),
          valu('v_readfirstlane_b32', s(sWv), 'v2'),
          valu('v_lshrrev_b32', 'v4', 4, 'v1'),
          valu('v_bfe_u32', 'v5', 'v1', 2, 2),
          valu('v_and_b32', 'v6', 3, 'v1'))
    B.add(salu('s_and_b32', 's3', 's2', 7), salu('s_lshr_b32', 's4', 's2', 3),
          salu('s_lshr_b32', 's5', 's3', 2),
          salu('s_bfe_u32', 's6', 's3', 0x10001),
          salu('s_lshl_b32', 's6', 's6', 2), salu('s_and_b32', 's7', 's4', 3), salu('s_add_u32', 's6', 's6', 's7'),
          salu('s_and_b32', 's7', 's3', 1), salu('s_lshl_b32', 's7', 's7', 3), salu('s_lshr_b32', 's4', 's4', 2),
          salu('s_add_u32', 's7', 's7', 's4'),
          salu('s_lshl_b32', s(sW4k), s(sWv), 12))
    B.add(valu('v_xor_b32', 'v7', 'v4', 'v3'), valu('v_lshlrev_b32', 'v7', 4, 'v7'),
          valu('v_lshl_add_u32', v(vKA), 'v3', 8, 'v7'))
    for q in range(1, 4): B.add(valu('v_xor_b32', v(vKA+q), 64*q, v(vKA)))
    B.add(valu('v_lshl_add_u32', 'v7', 'v4', 2, 'v5'),
          valu('v_and_b32', v(vT), 7, 'v7'), valu('v_lshlrev_b32', v(vT), 5, v(vT)),
          valu('v_lshl_add_u32', v(vT), 'v7', 8, v(vT)),
          valu('v_lshl_add_u32', v(vT), 'v6', 3, v(vT)))
    for dt in range(8):
        B.add(valu('v_xor_b32', v(vVA+dt), 32*dt, v(vT)))
    for dt in range(8):
        B.add(valu('v_add_u32', v(vVA+dt), VBASE + SLOT, v(vVA+dt)))
    B.add(valu('v_lshlrev_b32', 'v7', 12, 'v2'), valu('v_lshl_add_u32', 'v7', 'v4', 8, 'v7'))
    for m in range(4):
        B.add(valu('v_add_u32', v(vT), 4*m, 'v4'), valu('v_xor_b32', v(vT), v(vT), 'v3'),
              valu('v_lshl_add_u32', v(vKD+m), v(vT), 4, 'v7'))
    for m in range(2):
        B.add(valu('v_add_u32', v(vT), 4*m, 'v4'), valu('v_lshlrev_b32', v(vT), 1, v(vT)),
              valu('v_xor_b32', v(vT), v(vT), 'v3'), valu('v_lshl_add_u32', v(vVD+m), v(vT), 4, 'v7'))
    B.add(valu('v_lshlrev_b32', 'v7', 19, 'v2'), valu('v_lshl_add_u32', v(vOst), 'v1', 4, 'v7'))
    B.add(valu('v_lshl_add_u32', 'v7', 'v4', 3, 'v5'), valu('v_lshlrev_b32', 'v7', 7, 'v7'),
          valu('v_lshrrev_b32', v(vT), 1, 'v5'), valu('v_lshlrev_b32', v(vT), 2, v(vT)),
          valu('v_xor_b32', v(vT), v(vT), 'v6'),
          valu('v_lshl_add_u32', 'v7', v(vT), 4, 'v7'),
          valu('v_add_u32', v(vWA), WBASE, 'v7'), valu('v_xor_b32', 'v7', 64, 'v7'),
          valu('v_add_u32', v(vWA+1), WBASE, 'v7'))
    B.add(valu('v_lshrrev_b32', 'v7', 3, 'v1'),
          valu('v_bfe_u32', v(vT), 'v1', 4, 1), valu('v_lshlrev_b32', v(vT), 2, v(vT)),
          valu('v_and_b32', v(vT+1), 7, 'v1'), valu('v_xor_b32', v(vT), v(vT), v(vT+1)),
          valu('v_lshl_add_u32', 'v7', 'v2', 5, 'v7'), valu('v_lshlrev_b32', 'v7', 13, 'v7'),
          valu('v_lshl_add_u32', v(vWD), v(vT), 4, 'v7'))
    B.add(valu('v_lshlrev_b32', 'v7', 6, 'v2'), valu('v_add_u32', 'v7', 'v7', 'v4'), valu('v_lshlrev_b32', 'v7', 10, 'v7'))
    for m in range(4):
        B.add(valu('v_add_u32', v(vT), 4*m, 'v4'), valu('v_xor_b32', v(vT), v(vT), 'v3'),
              valu('v_lshl_add_u32', v(vXD+m), v(vT), 4, 'v7'))
        if m: B.add(valu('v_add_u32', v(vXD+m), 4096*m, v(vXD+m)))
    B.add(valu('v_lshlrev_b32', 'v7', 12, 'v2'))
    for q in range(4):
        B.add(valu('v_add_u32', v(vXR+q), v(vKA+q), 'v7'))
    for q in range(4):
        B.add(valu('v_add_u32', v(vXR+4+q), XS[2]*SLOT, v(vXR+q)), valu('v_add_u32', v(vXR+q), XS[0]*SLOT, v(vXR+q)))
    for q in range(4): B.add(valu('v_mov_b32', v(vOnes+q), '0x3f803f80'))
    B.add(raw("s_waitcnt lgkmcnt(0)", 'misc'))
    B.add(salu('s_cmp_eq_u32', 's5', 0),
          salu('s_cselect_b64', s(sX, 2), 's[36:37]', 's[46:47]'),
          salu('s_cselect_b64', s(sK, 2), 's[38:39]', 's[48:49]'),
          salu('s_cselect_b64', s(sV, 2), 's[40:41]', 's[50:51]'),
          salu('s_cselect_b64', s(sW, 2), 's[42:43]', 's[52:53]'))
    B.add(salu('s_lshl_b32', s(sT0), 's6', 18),
          salu('s_add_u32', s(sX), s(sX), s(sT0)), salu('s_addc_u32', s(sX+1), s(sX+1), 0),
          salu('s_mov_b32', s(sX+2), 262144), salu('s_mov_b32', s(sX+3), '0x00020000'),
          salu('s_lshl_b32', s(sT0), 's7', 9),
          salu('s_add_u32', s(sW), s(sW), s(sT0)), salu('s_addc_u32', s(sW+1), s(sW+1), 0),
          salu('s_sub_u32', s(sW+2), 4194304, s(sT0)), salu('s_mov_b32', s(sW+3), '0x00020000'),
          salu('s_lshl_b32', s(sT0), 's6', 4), salu('s_add_u32', s(sT0), s(sT0), 's7'), salu('s_lshl_b32', s(sT0), s(sT0), 19),
          salu('s_add_u32', s(sK), s(sK), s(sT0)), salu('s_addc_u32', s(sK+1), s(sK+1), 0),
          salu('s_mov_b32', s(sK+2), 524288), salu('s_mov_b32', s(sK+3), '0x00020000'),
          salu('s_add_u32', s(sV), s(sV), s(sT0)), salu('s_addc_u32', s(sV+1), s(sV+1), 0),
          salu('s_mov_b32', s(sV+2), 524288), salu('s_mov_b32', s(sV+3), '0x00020000'),
          salu('s_lshl_b32', s(sT0), 's5', 3), salu('s_add_u32', s(sT0), s(sT0), 's6'), salu('s_lshl_b32', s(sT0), s(sT0), 21),
          salu('s_add_u32', s(sO), 's60', s(sT0)), salu('s_addc_u32', s(sO+1), 's61', 0),
          salu('s_mov_b32', s(sO+2), 2097152), salu('s_mov_b32', s(sO+3), '0x00020000'),
          salu('s_cmp_eq_u32', 's5', 0), salu('s_cselect_b64', 's[80:81]', 's[44:45]', 's[54:55]'),
          salu('s_lshl_b32', s(sT0), 's6', 4), salu('s_add_u32', s(sT0), s(sT0), 's7'), salu('s_lshl_b32', s(sT0), s(sT0), 15),
          salu('s_add_u32', 's80', 's80', s(sT0)), salu('s_addc_u32', 's81', 's81', 0),
          salu('s_mov_b32', 's82', 32768), salu('s_mov_b32', 's83', '0x00020000'),
          salu('s_lshl_b32', s(sOoff), 's7', 13),
          salu('s_mov_b32', s(sC), hex(SCALE)), salu('s_mov_b32', s(sC+1), hex(SCALE)),
          salu('s_mov_b32', s(sThr), '0x5f800000'),
          salu('s_mov_b32', s(sItem), 0), salu('s_mov_b32', s(sSlot), SLOT))
    return B

def xdma(beta, m):
    kg, j = divmod(beta, 4)
    su = [salu('s_add_u32', 'm0', s(sW4k), XS[beta % 4]*SLOT + 1024*m)]
    if m == 0: su.append(salu('s_mov_b32', s(sJ), 16384*j + 256*kg))
    return su, bdma(v(vXD+m), s(sX, 4), s(sJ), 0, tag=('X', beta), flags=OPT['x_flags'])
def xread(beta, ks):
    kg, j = divmod(beta, 4); sg = beta % 4
    d = vX + (kg % 2)*64 + (j*4+ks)*4
    return dsr('ds_read_b128', v(d, 4), v(vXR + 4*(sg//2) + ks), SLOT*(sg % 2))
def wdma(c, m):
    kg, dq = divmod(c, 4)
    return [salu('s_add_u32', 'm0', s(sW4k), WBASE + SLOT*(c % 4) + 1024*m),
            salu('s_mov_b32', s(sT0 + (m & 1)), kg*128*8192 + m*65536 + dq*128)], \
           bdma(v(vWD), s(sW, 4), s(sT0 + (m & 1)), 0, tag=('W', c), flags=OPT['w_flags'])
def kv_static(kind, n):
    if kind == 'K':
        setup = [salu('s_add_u32', 'm0', s(sW4k), KBASE + SLOT*(n % NSL)), salu('s_mov_b32', s(sT2), n*SLOT)]
        return setup, [bdma(v(vKD+m), s(sK, 4), s(sT2), 1024*m, tag=('K', n), flags=OPT['kv_flags']) for m in range(4)]
    setup = [salu('s_add_u32', 'm0', s(sW4k), VBASE + SLOT*((n+2) % NSL)), salu('s_mov_b32', s(sT2), n*SLOT)]
    return setup, [bdma(v(vVD+(m & 1)), s(sV, 4), s(sT2), 1024*m, tag=('V', n), flags=OPT['kv_flags']) for m in range(4)]
def wread(T, n):
    c, tp = divmod(T, 4); sl, e = divmod(tp, 2); ks, hh = divmod(n, 2)
    d = vWf + (T % 2)*16 + ks*4 + hh*2
    return dsr('ds_read_b64_tr_b16', v(d, 2), v(vWA+sl), SLOT*(c % 4) + 4096*ks + 512*hh + 8*e)

def k1_qproj():
    pre = Block('qpre')
    for m in range(4):
        su, d = wdma(0, m); pre.add(su, d)
    for beta in range(4):
        for m in range(4):
            su, d = xdma(beta, m); pre.add(su, d)
    for c in range(1, 4):
        for m in range(4):
            su, d = wdma(c, m); pre.add(su, d)
    for beta in range(4):
        pre.add(waitvm((lambda b_: lambda ctx: [('X', b_)])(beta)))
        if beta == 0:
            pre.add(barrier()); pre.add(stamp(1))
            for n in range(8): pre.add(wread(0, n))
        if beta == 1: pre.add(waitlg(R('v', vWf, 16)))
        if beta == 3: pre.add(waitlg(R('v', vX, 16)))
        for ks in range(4): pre.add(xread(beta, ks))
    pre.add(waitlg(R('v', vX, 64)))
    S = Sched()
    for T in range(64):
        c, tp = divmod(T, 4); kg, dq = divmod(c, 4); sl, e = divmod(tp, 2)
        head = dq >> 1; ss = 2*(dq & 1) + sl
        for j in range(4):
            acc = a(128*head + ((j*4+ss)*2+e)*4, 4)
            for ks in range(4):
                S.add_mfma(mfma(acc, v(vWf + (T % 2)*16 + ks*4, 4), v(vX + (kg % 2)*64 + (j*4+ks)*4, 4),
                                '0' if (kg == 0 and ks == 0) else acc))
        if T + 1 < 64:
            for n in range(8): S.put(16*T + 4 + n, wread(T+1, n), 'mem')
            S.put(16*T + 15, waitlg(R('v', vWf + ((T+1) % 2)*16, 8)), 'free')
        if T: S.put(16*T + 1, waitlg(R('v', vWf + (T % 2)*16 + 8, 8)), 'free')
    x_dma = {4: 0, 5: 0, 6: 0, 7: 1, 8: 3, 9: 3, 10: 4, 11: 5, 12: 6, 13: 7, 14: 8, 15: 9}
    x_rd = {4: 2, 5: 2, 6: 3, 7: 3, 8: 5, 9: 6, 10: 7, 11: 7, 12: 8, 13: 9, 14: 10, 15: 11}
    kv = OPT.get('kv_sched') or {7: [('K', 0)], 8: [('V', 0)], 9: [('K', 1)], 10: [('K', 2)], 11: [('V', 1)], 12: [('V', 2)],
                                 13: [('K', 3)], 14: [('K', 4)], 15: [('V', 3)]}
    for c in range(16):
        b = 64*c
        rb = [be for be, cc in x_rd.items() if cc == c]
        g = b
        for be in rb:
            for ks in range(4):
                S.put(g, xread(be, ks), 'mem'); g += 1
                if g % 16 == 4: g += 8
        def slots():
            g = b + 16
            while True:
                if g % 16 in (12, 14, 0, 2) or (g % 16 in (13, 1, 3) and dense): yield g
                g += 1
        todo = []
        if 4 <= c + 3 < 16:
            for m in range(4): todo.append(wdma(c+3, m))
        for be in [be for be, cc in x_dma.items() if cc == c]:
            for m in range(4): todo.append(xdma(be, m))
        for kind, n in kv.get(c, []):
            su, ds_ = kv_static(kind, n)
            for m, d in enumerate(ds_): todo.append((su if m == 0 else [], d))
        dense = len(todo) > 9
        sl_ = slots()
        for su, d in todo:
            g = next(sl_)
            assert g < b + 51 or g > b + 52
            for i_ in su: S.put(g-1 if 'm0' in i_.w else g, i_, 'valu' if 'm0' in i_.w else 'free')
            S.put(g, d, 'mem')
        tags = [('W', c+1)] if c < 15 else [('K', 0)]
        tags += [('X', be) for be, cc in x_rd.items() if cc == c+1]
        S.put(b + 51, waitvm((lambda t: lambda ctx: t)(tags)), 'free')
        if OPT.get('qstamps'):
            for i_ in stamp(50): S.put(b + 51, i_, 'free')
        S.put(b + 51, barrier(), 'free')
        if OPT.get('qstamps'):
            for i_ in stamp(50): S.put(b + 51, i_, 'free')
    body = Block('qproj', S.flatten(0, 1024))
    cv = Block('qcvt')
    cv.add(stamp(2))
    for q in range(4): cv.add(dsr('ds_read_b128', v(vKf+4*q, 4), v(vKA+q), 0))
    tmp = [48, 56, 80, 88]
    for head in (1, 0):
        for f in range(16):
            t = tmp[f % 4]
            for r in range(8): cv.add(valu('v_accvgpr_read_b32', v(t+r), a(128*head + 8*f + r)))
            for r in range(0, 8, 2): cv.add(valu('v_pk_mul_f32', v(t+r, 2), v(t+r, 2), s(sC, 2)))
            for r in range(4):
                d = vQ + 4*f + r if head == 0 else t + r
                cv.add(valu('v_cvt_pk_bf16_f32', v(d), v(t+2*r), v(t+2*r+1)))
            if head == 1:
                for r in range(4): cv.add(valu('v_accvgpr_write_b32', a(aQ2 + 4*f + r), v(t+r)))
    if OPT['wo_warm'] == 1: cv.add(wo_touch())
    cv.add(salu('s_mov_b32', s(sKoff), 5*SLOT), salu('s_mov_b32', s(sVoff), 4*SLOT),
           salu('s_add_u32', s(sKm0), s(sW4k), KBASE), salu('s_add_u32', s(sVm0), s(sW4k), VBASE + SLOT),
           salu('s_mov_b32', s(sKrs), 0), salu('s_mov_b32', s(sVrs), SLOT))
    return pre, body, cv

def qk(j, q, first_c, kbuf=vKf):
    D = v(vS + 4*j, 4)
    return mfma(D, v(kbuf + 4*q, 4), v(vQ + (4*j+q)*4, 4), first_c if q == 0 else D)
def Preg(par, u, j): return vP + par*32 + (u*4+j)*4
def sm_ops(par, t, j):
    ex = [valu('v_exp_f32', v(vS+4*j+r), v(vS+4*j+r)) for r in range(4)]
    p = Preg(par, t//2, j) + (t % 2)*2
    cv = [valu('v_cvt_pk_bf16_f32', v(p+h), v(vS+4*j+2*h), v(vS+4*j+2*h+1)) for h in range(2)]
    return ex, cv
def kread(t, q, kbuf=vKf): return dsr('ds_read_b128', v(kbuf+4*q, 4), v(vKA+q), 4096*t)
def vread(dt, u, e):
    return dsr('ds_read_b64_tr_b16', v(vVf + (dt % 2)*8 + u*4 + e*2, 2), v(vVA+dt), 8192*u + 4096*e)
def ring_read_adv(srs, sd):
    return [salu('s_add_u32', s(srs), s(srs), SLOT), salu('s_cmp_eq_u32', s(srs), NSL*SLOT),
            salu('s_cselect_b32', s(sd), hex((SLOT - NSL*SLOT) & 0xffffffff), s(sSlot)), salu('s_cselect_b32', s(srs), 0, s(srs))]
def ring_dma_adv(sm0, soff, lim):
    return [salu('s_add_u32', s(soff), s(soff), SLOT), salu('s_add_u32', s(sm0), s(sm0), SLOT),
            salu('s_cmp_ge_u32', s(sm0), lim), salu('s_cselect_b32', s(sT0), NSL*SLOT, 0), salu('s_sub_u32', s(sm0), s(sm0), s(sT0))]
def kv_dyn(kind, m):
    if kind == 'K':
        return bdma(v(vKD+m), s(sK, 4), s(sKoff), 1024*m, tag=lambda i: ('K', i+4), flags=OPT['kv_flags'])
    return bdma(v(vVD+(m & 1)), s(sV, 4), s(sVoff), 1024*m, tag=lambda i: ('V', i+3), flags=OPT['kv_flags'])

def k1_m0():
    B = Block('m0')
    B.add(waitlg(R('v', vKf, 16)))
    for j in range(4):
        for q in range(4): B.add(qk(j, q, '0'))
    m = vT; c = vT+4
    for j in range(4): B.add(valu('v_max3_f32', v(m+j), v(vS+4*j), v(vS+4*j+1), v(vS+4*j+2)))
    for j in range(4): B.add(valu('v_max_f32', v(m+j), v(m+j), v(vS+4*j+3)))
    for op in ('v_permlane16_swap_b32', 'v_permlane32_swap_b32'):
        for j in range(4): B.add(valu('v_mov_b32', v(c+j), v(m+j)))
        for j in range(4): B.add(valu(op, v(m+j), v(c+j)))
        for j in range(4): B.add(valu('v_max_f32', v(m+j), v(m+j), v(c+j)))
    for j in range(4):
        for r in range(4): B.add(valu('v_sub_f32', v(vNeg+4*j+r), 0, v(m+j)))
    return B

def head_ops(S, par_prev):
    ex, cv = sm_ops(par_prev, 3, 3)
    S.put(0, ex[1], 'valu'); S.put(1, cv[0], 'valu'); S.put(2, ex[2], 'valu'); S.put(4, ex[3], 'valu'); S.put(5, cv[1], 'valu')

def k1_iter0():
    S = Sched()
    bufB = vP + 32
    for t in range(4):
        kb = vKf if t % 2 == 0 else bufB
        for j in range(4):
            for q in range(4): S.add_mfma(qk(j, q, v(vNeg+4*j, 4), kb))
        if t < 3:
            nb = bufB if t % 2 == 0 else vKf
            for q in range(4): S.put(16*t + 1 + 2*q, kread(t+1, q, nb), 'mem')
            S.put(16*t + 15, waitlg(R('v', nb, 16)), 'free')
    for t in range(4):
        for j in range(4):
            ex, cv = sm_ops(0, t, j)
            g0 = 16*t + 4*j + 7
            if (t, j) == (3, 3):
                S.put(63, ex[0], 'valu'); continue
            seq = [(g0, ex[0]), (g0+1, ex[1]), (g0+2, ex[2]), (g0+2, cv[0]), (g0+3, ex[3]), (g0+4, cv[1])]
            for g, i in seq: S.put(min(g, 63), i, 'valu')
    for n, i in enumerate(ring_read_adv(sKrs, sKd)): S.put(2+n, i, 'free')
    for n, i in enumerate(ring_read_adv(sVrs, sVd)): S.put(8+n, i, 'free')
    for dt in range(8): S.put(16 + 2*dt, valu('v_add_u32', v(vVA+dt), s(sVd), v(vVA+dt)), 'valu')
    for q in range(4): S.put(42 + q, valu('v_add_u32', v(vKA+q), s(sKd), v(vKA+q)), 'valu')
    S.put(49, waitvm(lambda i: [('K', i+1), ('V', i)]), 'free'); S.put(49, barrier(), 'free')
    for q in range(4): S.put(51 + 2*q, kread(0, q), 'mem')
    S.put(62, waitlg(R('v', vKf, 16)), 'free') if False else None
    for n, (u, e) in enumerate(((0, 0), (0, 1), (1, 0))): S.put(59 + 2*n if n < 2 else 62, vread(0, u, e), 'mem')
    S.put(63, waitlg(R('v', vKf, 16)), 'free')
    return Block('iter0', S.flatten(0, 64))

def pv_group(S, p, par_prev, first):
    for dt in (2*p, 2*p+1):
        for j in range(4):
            D = a(aO + (dt*4+j)*4, 4)
            for u in range(2):
                S.add_mfma(mfma(D, v(vVf + (dt % 2)*8 + u*4, 4), v(Preg(par_prev, u, j), 4), '0' if (first and u == 0) else D))
    D = v(vL + 4*p, 4)
    for u in range(2):
        S.add_mfma(mfma(D, v(vOnes, 4), v(Preg(par_prev, u, p), 4), '0' if (first and u == 0) else D))

def k1_body(name, par, first=False, loop_end=None):
    S = Sched()
    for p in range(4):
        for j in range(4):
            for q in range(4): S.add_mfma(qk(j, q, v(vNeg+4*j, 4)))
        pv_group(S, p, 1-par, first)
    head_ops(S, 1-par)
    for t in range(4):
        b = 34*t
        for j in range(4):
            ex, cv = sm_ops(par, t, j)
            g0 = b + 8 + 8*j
            for g, i in [(g0, ex[0]), (g0+2, ex[1]), (g0+3, cv[0]), (g0+4, ex[2]), (g0+6, ex[3]), (g0+7, cv[1])]:
                if g < 136: S.put(g, i, 'valu')
        for q in range(4): S.put(b + 19 + 2*q, kread((t+1) % 4, q), 'mem')
        S.put(b + 32, waitlg(R('v', vKf, 16)), 'free')
        S.put(b + 1, vread(2*t, 1, 1), 'mem')
        for n, (u, e) in enumerate(((0, 0), (0, 1), (1, 0), (1, 1))): S.put(b + 3 + 2*n, vread(2*t+1, u, e), 'mem')
        S.put(b + 14, waitlg(R('v', vVf, 16)), 'free')
        for n, (u, e) in enumerate(((0, 0), (0, 1), (1, 0))): S.put(b + 29 + 2*n, vread((2*t+2) % 8, u, e), 'mem')
        for n in range(2): S.put(b + 21 + 4*n, valu('v_add_u32', v(vVA+2*t+n), s(sVd), v(vVA+2*t+n)), 'valu')
        kind = 'K' if t < 2 else 'V'
        for n in range(2): S.put(b + 11 + 16*n, kv_dyn(kind, 2*(t % 2) + n), 'mem')
    for n, g in enumerate((3, 7, 9, 13)): S.put(102 + g, valu('v_add_u32', v(vKA+n), s(sKd), v(vKA+n)), 'valu')
    S.put(10, salu('s_mov_b32', 'm0', s(sKm0)), 'free')
    S.put(68 + 10, salu('s_mov_b32', 'm0', s(sVm0)), 'free')
    for n, i in enumerate(ring_read_adv(sVrs, sVd)): S.put(2 + 2*n, i, 'free')
    for n, i in enumerate(ring_read_adv(sKrs, sKd)): S.put(36 + 2*n, i, 'free')
    for n, i in enumerate(ring_dma_adv(sKm0, sKoff, NSL*SLOT)): S.put(64 + 2*n - (0 if n < 1 else 0) + (24 if False else 0), i, 'free') if False else None
    for n, i in enumerate(ring_dma_adv(sKm0, sKoff, NSL*SLOT)): S.put(84 + 2*n, i, 'free')
    if OPT.get('lstamps'):
        for i_ in stamp(60): S.put(102 + 17, i_, 'free')
    S.put(102 + 17, waitvm(lambda i: [('K', i+1), ('V', i)]), 'free'); S.put(102 + 17, barrier(), 'free')
    if OPT.get('lstamps'):
        for i_ in stamp(60): S.put(102 + 17, i_, 'free')
    adv = ring_dma_adv(sVm0, sVoff, 2*NSL*SLOT)
    for n, i in enumerate(adv): S.put(102 + 28 + n, i, 'free')
    ins = S.flatten(0, 136)
    B = Block(name, ins)
    if loop_end:
        B.add(salu('s_sub_u32', s(sCnt), s(sCnt), 1), raw(f"s_cbranch_scc0 {loop_end}", 'branch', r=['scc']))
    B.sched = S
    return B

def k1_drain():
    S = Sched()
    for p in range(4): pv_group(S, p, 1, False)
    head_ops(S, 1)
    B = Block('drain')
    B.add(vread(0, 1, 1))
    for (u, e) in ((0, 0), (0, 1), (1, 0), (1, 1)): B.add(vread(1, u, e))
    B.add(waitlg(R('v', vVf, 8)))
    for p in range(4):
        b = 18*p
        S.put(b + 7, waitlg(R('v', vVf + 8, 8)), 'free')
        if p < 3:
            for n, (u, e) in enumerate(((0, 0), (0, 1), (1, 0), (1, 1))):
                S.put(b + 8 + n, vread(2*p+2, u, e), 'mem')
                S.put(b + 16 + n, vread(2*p+3, u, e), 'mem')
            S.put(b + 17, waitlg(R('v', vVf, 8)), 'free')
    S.put(12, salu('s_mov_b32', 'm0', s(sKm0)), 'free')
    for m in range(4): S.put(13 + 6*m if m else 13, kv_dyn('K', m), 'mem') if False else None
    for m, g in enumerate((13, 15, 23, 25)): S.put(g, kv_dyn('K', m), 'mem')
    S.put(30, salu('s_mov_b32', 'm0', s(sVm0)), 'free')
    for m, g in enumerate((31, 33, 41, 43)): S.put(g, kv_dyn('V', m), 'mem')
    for n, i in enumerate(ring_dma_adv(sKm0, sKoff, NSL*SLOT)): S.put(46 + n, i, 'free')
    for n, i in enumerate(ring_dma_adv(sVm0, sVoff, 2*NSL*SLOT)): S.put(56 + n, i, 'free')
    B.add(S.flatten(0, 72))
    return B

def k1_check():
    B = Block('chk')
    B.add(valu('v_add_f32', v(vT), v(vL), v(vL+4)), valu('v_add_f32', v(vT+1), v(vL+8), v(vL+12)),
          valu('v_add_f32', v(vT), v(vT), v(vT+1)),
          valu('v_cmp_nge_f32', 'vcc', s(sThr), v(vT)),
          salu('s_cmp_lg_u64', 'vcc', 0),
          raw("s_cbranch_scc1 L_slow", 'branch', r=['scc']))
    return B

def k1_epi():
    B = Block('epi')
    rl = vT
    for j in range(4): B.add(valu('v_rcp_f32', v(rl+2*j), v(vL+4*j)))
    n = 0
    for j in range(4):
        B.add(salu('s_add_u32', s(sT0 + (j & 1)), s(sOoff), 131072*j))
        for sp in range(4):
            t = vP + (n % 4)*8; d = vP + 32 + (n % 8)*4; n += 1
            for h in range(2):
                for r in range(4): B.add(valu('v_accvgpr_read_b32', v(t+4*h+r), a(aO + ((2*sp+h)*4+j)*4 + r)))
            for r in range(0, 8, 2): B.add(valu('v_pk_mul_f32', v(t+r, 2), v(t+r, 2), v(rl+2*j, 2), extra='op_sel_hi:[1,0]'))
            for r in range(4): B.add(valu('v_cvt_pk_bf16_f32', v(d+r), v(t+2*r), v(t+2*r+1)))
            B.add(bstore('buffer_store_dwordx4', v(d, 4), v(vOst), s(sO, 4), s(sT0 + (j & 1)), 1024*sp, tag='O', flags=OPT['o_flags']))
    return B

def k1_next():
    B = Block('next')
    B.add(salu('s_cmp_lg_u32', s(sItem), 0), raw("s_cbranch_scc1 L_k1_fin", 'branch', r=['scc']))
    for r in range(64): B.add(valu('v_accvgpr_read_b32', v(vQ+r), a(aQ2+r)))
    B.add(salu('s_mov_b32', s(sItem), 1), salu('s_add_u32', s(sOoff), s(sOoff), 4096))
    B.add(raw("s_branch L_item", 'branch'))
    return B

def k1_slow():
    kf, Sx, Pp = vP, vP+32, vS
    m, l, al, t = vNeg, vNeg+4, vNeg+8, vNeg+12
    ak, av = vT+8, vT+9
    pk = vVf
    pre = Block('slow_pre')
    pre.add(valu('v_and_b32', 'v1', 63, 'v0'), valu('v_and_b32', 'v3', 15, 'v0'), valu('v_lshrrev_b32', 'v4', 4, 'v1'),
            valu('v_lshlrev_b32', v(ak), 8, 'v3'), valu('v_lshl_add_u32', v(ak), 'v4', 4, v(ak)),
            valu('v_lshlrev_b32', v(av), 10, 'v4'), valu('v_lshl_add_u32', v(av), 'v3', 1, v(av)))
    for j in range(4): pre.add(valu('v_mov_b32', v(m+j), '0xff800000'), valu('v_mov_b32', v(l+j), 0))
    for r in range(128): pre.add(valu('v_accvgpr_write_b32', a(aO+r), 0))
    pre.add(salu('s_lshl_b32', s(sT0), s(sItem), 18), salu('s_add_u32', s(sT1), s(sT0), 4096), salu('s_mov_b32', s(sCnt), 31))
    L = Block('slow_loop')
    for tt in range(2):
        for q in range(4):
            L.add(bload('buffer_load_dwordx4', v(kf+(tt*4+q)*4, 4), v(ak), s(sK, 4), s(sT0+tt), 64*q))
    L.add(waitvm0())
    for tt in range(2):
        for j in range(4):
            D = v(Sx + (j*2+tt)*4, 4)
            for q in range(4): L.add(mfma(D, v(kf+(tt*4+q)*4, 4), v(vQ+(4*j+q)*4, 4), '0' if q == 0 else D))
    for j in range(4):
        x = Sx + 8*j
        L.add(valu('v_max3_f32', v(t), v(x), v(x+1), v(x+2)), valu('v_max3_f32', v(t), v(t), v(x+3), v(x+4)),
              valu('v_max3_f32', v(t), v(t), v(x+5), v(x+6)), valu('v_max3_f32', v(t), v(t), v(x+7), v(m+j)))
        for op in ('v_permlane16_swap_b32', 'v_permlane32_swap_b32'):
            L.add(valu('v_mov_b32', v(t+1), v(t)), valu(op, v(t), v(t+1)), valu('v_max_f32', v(t), v(t), v(t+1)))
        L.add(valu('v_sub_f32', v(al+j), v(m+j), v(t)), valu('v_exp_f32', v(al+j), v(al+j)), valu('v_mov_b32', v(m+j), v(t)))
        L.add(valu('v_mul_f32', v(l+j), v(l+j), v(al+j)))
        for r in range(8):
            L.add(valu('v_sub_f32', v(x+r), v(x+r), v(t)), valu('v_exp_f32', v(x+r), v(x+r)))
        for r in range(8): L.add(valu('v_add_f32', v(l+j), v(l+j), v(x+r)))
        for r in range(4): L.add(valu('v_cvt_pk_bf16_f32', v(Pp+4*j+r), v(x+2*r), v(x+2*r+1)))
    for half in range(2):
        for d4 in range(4):
            dt = half*4 + d4
            for jj in range(8):
                L.add(bload('buffer_load_ushort', v(kf+d4*8+jj), v(av), s(sV, 4), s(sT0+(jj//4)), (jj % 4)*256 + 32*dt))
        if half == 0:
            for dt in range(8):
                for j in range(4):
                    for r in range(4):
                        x = aO + (dt*4+j)*4 + r
                        L.add(valu('v_accvgpr_read_b32', v(t+r), a(x)))
                    for r in range(4): L.add(valu('v_mul_f32', v(t+r), v(t+r), v(al+j)))
                    for r in range(4):
                        x = aO + (dt*4+j)*4 + r
                        L.add(valu('v_accvgpr_write_b32', a(x), v(t+r)))
        L.add(waitvm0())
        for d4 in range(4):
            dt = half*4 + d4
            for r in range(4): L.add(valu('v_lshl_or_b32', v(pk+4*d4+r), v(kf+d4*8+2*r+1), 16, v(kf+d4*8+2*r)))
        for d4 in range(4):
            dt = half*4 + d4
            for j in range(4):
                D = a(aO + (dt*4+j)*4, 4)
                L.add(mfma(D, v(pk+4*d4, 4), v(Pp+4*j, 4), D))
    L.add(salu('s_add_u32', s(sT0), s(sT0), 8192), salu('s_add_u32', s(sT1), s(sT1), 8192),
          salu('s_sub_u32', s(sCnt), s(sCnt), 1), raw("s_cbranch_scc0 L_slow_loop", 'branch', r=['scc']))
    post = Block('slow_post')
    for j in range(4):
        for op in ('v_permlane16_swap_b32', 'v_permlane32_swap_b32'):
            post.add(valu('v_mov_b32', v(t), v(l+j)), valu(op, v(l+j), v(t)), valu('v_add_f32', v(l+j), v(l+j), v(t)))
        post.add(valu('v_mov_b32', v(vL+4*j), v(l+j)))
    post.add(nop(7), raw("s_branch L_epi", 'branch'))
    return pre, L, post

def wo_touch():
    sWo = 80
    return [valu('v_and_b32', 'v1', 63, 'v0'), valu('v_lshlrev_b32', 'v1', 7, 'v1'),
            salu('s_lshl_b32', s(sT2), s(sWv), 13),
            bload('buffer_load_dword', 'v2', 'v1', s(sWo, 4), s(sT2), 0, tag='WO')]

def gen_k1():
    pro = k1_prologue(); qpre, qproj, qcvt = k1_qproj()
    m0 = k1_m0(); it0 = k1_iter0()
    b1 = k1_body('b1f', 1, first=True); be = k1_body('beven', 0); bo = k1_body('bodd', 1, loop_end='L_loop')
    setc = Block('setc', [salu('s_mov_b32', s(sCnt), 6)])
    dr = k1_drain(); chk = k1_check(); epi = k1_epi(); nx = k1_next()
    spre, sloop, spost = k1_slow()
    def item(base, slow):
        t = [(m0, base), (it0, base), (b1, base+1), (setc, 0)]
        for i in range(2, 16, 2): t += [(be, base+i), (bo, base+i+1)]
        t += [(dr, base+16), (chk, 0)]
        if slow: t += [(spre, 0), (sloop, 0), (sloop, 0), (spost, 0)]
        t += [(epi, 0), (nx, 0)]
        return t
    head = [(pro, 0), (qpre, 0), (qproj, 0), (qcvt, 0)]
    tr_fast = head + item(0, False) + item(16, False)
    tr_slow = head + item(0, True) + item(16, True)
    resolve_waits(tr_fast)
    fix = ('pro', 'qpre', 'qcvt', 'm0', 'chk', 'epi', 'next', 'slow_pre', 'slow_loop', 'slow_post', 'iter0', 'drain')
    for tr in (tr_fast, tr_slow):
        e = hazards(tr, fix)
        if e: print("\n".join(e[:20])); raise SystemExit("hazards in k1")
    for tr in (tr_fast, tr_slow):
        e = check_waits(tr, verbose=True)
        if e: print("\n".join(e[:20])); raise SystemExit("wait errors in k1")
    over = [(g, be.sched.load(g)) for g in range(136) if be.sched.load(g)[1] > 2 or be.sched.load(g)[0] > 1]
    print("k1 body over-full gaps:", over)
    out = []
    out += [pro.text(), qpre.text(), qproj.text(), qcvt.text()]
    out += ["L_item:", stamp_text(3), m0.text(), stamp_text(4), it0.text(), stamp_text(5), b1.text(), setc.text(), stamp_text(6), ".p2align 6", "L_loop:", be.text(), bo.text(), stamp_text(7), dr.text(), chk.text(),
            "L_epi:", stamp_text(8), epi.text(), stamp_text(9), nx.text()]
    out += ["L_slow:", spre.text(), "L_slow_loop:", sloop.text(), spost.text()]
    out += ["L_k1_fin:"]
    if OPT['wo_warm'] == 2: out += [Block('wt', wo_touch()).text()]
    if OPT['stamps']:
        out += [stamp_out(0)]
    out += ["L_k1_end:", "    s_endpgm"]
    return "\n".join(out)

def k1_stamp_out():
    return ""

def gen_k2():
    sA, sB, sOut = 8, 12, 16
    vB, vAA, vDW, vBO, vOut = 32, 8, 12, 13, 14
    aA = 128
    sQ = 40
    pro = Block('k2pro')
    pro.add(raw("s_cmp_ge_u32 s2, 256", 'salu'), raw("s_cbranch_scc1 L_k2_end", 'branch'))
    pro.add(stamp(0))
    pro.add(raw("s_load_dwordx2 s[36:37], s[0:1], 32"), raw("s_load_dwordx2 s[38:39], s[0:1], 72"),
            raw("s_load_dwordx2 s[56:57], s[0:1], 80"), raw("s_load_dwordx2 s[60:61], s[0:1], 96"))
    pro.add(valu('v_and_b32', 'v1', 63, 'v0'), valu('v_lshrrev_b32', 'v2', 6, 'v0'), valu('v_and_b32', 'v3', 15, 'v0'),
            valu('v_readfirstlane_b32', s(sWv), 'v2'),
            valu('v_lshrrev_b32', 'v4', 4, 'v1'), valu('v_bfe_u32', 'v5', 'v1', 2, 2), valu('v_and_b32', 'v6', 3, 'v1'))
    pro.add(salu('s_and_b32', 's3', 's2', 7), salu('s_lshr_b32', 's4', 's2', 3),
            salu('s_lshr_b32', 's5', 's3', 2),
            salu('s_and_b32', 's6', 's3', 3), salu('s_lshl_b32', 's6', 's6', 2), salu('s_and_b32', 's7', 's4', 3),
            salu('s_add_u32', 's6', 's6', 's7'),
            salu('s_lshr_b32', 's7', 's4', 2))
    WL = 24576
    pro.add(valu('v_lshl_add_u32', 'v7', 'v4', 2, 'v5'),
            valu('v_bfe_u32', 'v16', 'v7', 1, 2), valu('v_lshlrev_b32', 'v16', 5, 'v16'),
            valu('v_lshl_add_u32', 'v16', 'v7', 7, 'v16'), valu('v_lshl_add_u32', 'v16', 'v6', 3, 'v16'),
            valu('v_mul_u32_u24', 'v17', WL, 'v2'))
    for nt in range(4):
        pro.add(valu('v_xor_b32', v(vAA+nt), 32*nt, 'v16'))
    for nt in range(4):
        pro.add(valu('v_add_u32', v(vAA+nt), v(vAA+nt), 'v17'))
    pro.add(valu('v_lshrrev_b32', 'v7', 3, 'v1'), valu('v_bfe_u32', 'v16', 'v1', 4, 2), valu('v_lshlrev_b32', 'v16', 1, 'v16'),
            valu('v_and_b32', 'v17', 7, 'v1'), valu('v_xor_b32', 'v16', 'v16', 'v17'),
            valu('v_lshl_add_u32', 'v7', 'v2', 10, 'v7'), valu('v_lshlrev_b32', 'v7', 10, 'v7'),
            valu('v_lshl_add_u32', v(vDW), 'v16', 4, 'v7'))
    pro.add(valu('v_lshlrev_b32', 'v7', 15, 'v2'), valu('v_lshl_add_u32', v(vBO), 'v1', 4, 'v7'))
    pro.add(valu('v_lshl_add_u32', 'v7', 'v2', 5, 'v3'), valu('v_lshlrev_b32', 'v7', 11, 'v7'),
            valu('v_lshl_add_u32', v(vOut), 'v4', 3, 'v7'))
    pro.add(salu('s_mul_i32', s(sW4k), s(sWv), WL))
    pro.add(raw("s_waitcnt lgkmcnt(0)", 'misc'))
    pro.add(salu('s_cmp_eq_u32', 's5', 0), salu('s_cselect_b64', s(sA, 2), 's[36:37]', 's[38:39]'),
            salu('s_lshl_b32', s(sT0), 's7', 7),
            salu('s_add_u32', s(sA), s(sA), s(sT0)), salu('s_addc_u32', s(sA+1), s(sA+1), 0),
            salu('s_sub_u32', s(sA+2), 4194304, s(sT0)), salu('s_mov_b32', s(sA+3), '0x00020000'),
            salu('s_lshl_b32', s(sT0), 's5', 4), salu('s_add_u32', s(sT0), s(sT0), 's6'), salu('s_lshl_b32', s(sT0), s(sT0), 20),
            salu('s_add_u32', s(sB), 's60', s(sT0)), salu('s_addc_u32', s(sB+1), 's61', 0),
            salu('s_mov_b32', s(sB+2), 1048576), salu('s_mov_b32', s(sB+3), '0x00020000'),
            salu('s_lshl_b32', s(sT0), 's6', 18), salu('s_lshl_b32', s(sT1), 's5', 10), salu('s_add_u32', s(sT0), s(sT0), s(sT1)),
            salu('s_lshl_b32', s(sT1), 's7', 7), salu('s_add_u32', s(sT0), s(sT0), s(sT1)),
            salu('s_add_u32', s(sOut), 's56', s(sT0)), salu('s_addc_u32', s(sOut+1), 's57', 0),
            salu('s_sub_u32', s(sOut+2), 4194304, s(sT0)), salu('s_mov_b32', s(sOut+3), '0x00020000'))
    NST = 16
    def bl(st, jq, u):
        d = vB + (st % 3)*64 + (jq*2+u)*4
        return bload('buffer_load_dwordx4', v(d, 4), v(vBO), s(sB, 4), s(sQ+jq), (2*st+u)*1024 % 4096, tag=('B', st), flags=OPT['b_flags'])
    def q_setup(st):
        return [salu('s_mov_b32', s(sQ+jq), jq*131072 + (st//2)*4096) for jq in range(8)]
    def ad(st, m):
        return [salu('s_add_u32', 'm0', s(sW4k), (st % 3)*8192 + 1024*m),
                salu('s_mov_b32', s(sT0 + (m & 1)), (st*64 + m*8)*1024)], \
               bdma(v(vDW), s(sA, 4), s(sT0 + (m & 1)), 0, tag=('A', st), flags=OPT['a_flags'])
    def ar(st, nt, n):
        u, e = divmod(n, 2)
        d = aA + (st % 2)*32 + (nt*2+u)*4 + e*2
        return dsr('ds_read_b64_tr_b16', a(d, 2), v(vAA+nt), (st % 3)*8192 + u*4096 + e*2048)
    vTA, vTS, vJ = 20, 22, 23
    pro.add(valu('v_and_b32', 'v16', 31, 'v1'),
            valu('v_lshlrev_b32', 'v17', 7, 'v16'), valu('v_lshl_add_u32', 'v17', 'v2', 15, 'v17'),
            salu('s_lshl_b32', s(sT0), 's7', 17), valu('v_add_u32', 'v17', s(sT0), 'v17'),
            valu('v_lshlrev_b32', 'v18', 12, 'v16'), valu('v_lshl_add_u32', 'v18', 'v2', 20, 'v18'),
            salu('s_and_b32', s(sT1), 's6', 3), salu('s_lshl_b32', s(sT1), s(sT1), 10), valu('v_add_u32', 'v18', s(sT1), 'v18'),
            valu('v_cmp_gt_u32', 'vcc', 32, 'v1'),
            valu('v_cndmask_b32', 'v17', 'v18', 'v17', 'vcc'),
            valu('v_mov_b32', 'v18', s(sA)), valu('v_mov_b32', 'v19', s(sB)), valu('v_cndmask_b32', v(vTA), 'v18', 'v19', 'vcc'),
            valu('v_mov_b32', 'v18', s(sA+1)), valu('v_mov_b32', 'v19', s(sB+1)), valu('v_cndmask_b32', v(vTA+1), 'v18', 'v19', 'vcc'),
            valu('v_mov_b32', 'v18', 131072), valu('v_mov_b32', 'v19', 4096), valu('v_cndmask_b32', v(vTS), 'v18', 'v19', 'vcc'),
            Ins(f"v_add_co_u32 v{vTA}, vcc, v{vTA}, v17", 'valu', [f"v{vTA}", 'v17'], [f"v{vTA}", 'vcc']),
            Ins(f"v_addc_co_u32 v{vTA+1}, vcc, 0, v{vTA+1}, vcc", 'valu', [f"v{vTA+1}", 'vcc'], [f"v{vTA+1}", 'vcc']))
    def touch(n):
        ld = Ins(f"global_load_dword v{vJ+n}, v[{vTA}:{vTA+1}], off" + (" " + OPT['t_flags'] if OPT['t_flags'] else ""), 'vmem', [f"v{vTA}", f"v{vTA+1}"], [f"v{vJ+n}"], tag=('T', n))
        adv = [Ins(f"v_add_co_u32 v{vTA}, vcc, v{vTA}, v{vTS}", 'valu', [f"v{vTA}", f"v{vTS}"], [f"v{vTA}", 'vcc']),
               Ins(f"v_addc_co_u32 v{vTA+1}, vcc, 0, v{vTA+1}, vcc", 'valu', [f"v{vTA+1}", 'vcc'], [f"v{vTA+1}", 'vcc'])]
        return ld, adv
    TD = OPT['t_dist']
    if TD:
        for n in range(8):
            if 2*n - TD < 0:
                ld, adv = touch(n); pro.add(ld, adv)
    for st in range(2):
        for m in range(8):
            su, d = ad(st, m); pro.add(su, d)
        if st % 2 == 0: pro.add(q_setup(st))
        for jq in range(8):
            for u in range(2): pro.add(bl(st, jq, u))
    pro.add(waitvm(lambda c: [('A', 0)]))
    for nt in range(4):
        for n in range(4): pro.add(ar(0, nt, n))
        if nt == 2: pro.add(waitlg(R('a', aA, 8)))
    pro.add(waitvm(lambda c: [('B', 0)]), waitlg(R('a', aA, 32)))
    S = Sched()
    for st in range(NST):
        for nt in range(4):
            for jq in range(8):
                D = a((nt*8+jq)*4, 4)
                for u in range(2):
                    S.add_mfma(mfma(D, a(aA + (st % 2)*32 + (nt*2+u)*4, 4), v(vB + (st % 3)*64 + (jq*2+u)*4, 4),
                                    '0' if (st == 0 and u == 0) else D))
        b = 64*st
        if TD and (st + TD) % 2 == 0 and (st + TD)//2 < 8:
            ld, adv = touch((st + TD)//2)
            S.put(b + 17, ld, 'mem'); S.put(b + 18, adv[0], 'valu'); S.put(b + 20, adv[1], 'valu')
        if st + 2 < NST:
            g = b
            for m in range(8):
                su, d = ad(st+2, m)
                S.put(g, su[0], 'free'); S.put(g+1, su[1], 'free'); S.put(g+1, d, 'mem'); g += 2
            if (st+2) % 2 == 0:
                for n, i in enumerate(q_setup(st+2)): S.put(b + 16 + n//2*0 + n, i, 'free') if False else None
                for n, i in enumerate(q_setup(st+2)): S.put(b + 16 + n//2, i, 'free')
            for n, (jq, u) in enumerate((jq, u) for jq in range(8) for u in range(2)):
                S.put(b + 21 + 2*n if n < 8 else b + 21 + 2*n, bl(st+2, jq, u), 'mem')
        if st + 1 < NST:
            S.put(b + 30, waitvm((lambda x: lambda c: [('A', x)])(st+1)), 'free')
            for n in range(16): S.put(b + 30 + 2*n, ar(st+1, n//4, n % 4), 'mem')
            S.put(b + 54, waitlg(R('a', aA + ((st+1) % 2)*32, 8)), 'free')
            S.put(b + 63, waitvm((lambda x: lambda c: [('B', x)])(st+1)), 'free')
            S.put(b + 63, waitlg(R('a', aA + ((st+1) % 2)*32, 32)), 'free')
            if OPT.get('qstamps'):
                for i_ in stamp(50): S.put(b + 63, i_, 'free')
    body = Block('k2body', S.flatten(0, 64*NST))
    ep = Block('k2epi')
    RB = 0
    ep.add(barrier())
    ep.add(valu('v_lshlrev_b32', 'v16', 4, 'v1'), valu('v_lshl_add_u32', 'v17', 'v2', 15, 'v16'))
    for jq in range(8):
        for nt in range(4):
            ep.add(dsw('ds_write_b128', 'v17', a((nt*8+jq)*4, 4), (jq*4+nt)*1024))
            if (jq*4+nt) % 8 == 7: ep.add(waitlg0())
    ep.add(barrier())
    ep.add(valu('v_lshl_add_u32', 'v18', 'v2', 13, 'v16'), valu('v_add_u32', 'v19', 65536, 'v18'))
    for src in range(4):
        for n in range(8):
            ep.add(dsr('ds_read_b128', v(vB + src*32 + n*4, 4), 'v18' if src < 2 else 'v19', (src % 2)*32768 + n*1024))
        ep.add(waitlg0())
    for r in range(32):
        ep.add(valu('v_add_f32', v(vB+r), v(vB+r), v(vB+32+r)), valu('v_add_f32', v(vB+64+r), v(vB+64+r), v(vB+96+r)))
    for r in range(32): ep.add(valu('v_add_f32', v(vB+r), v(vB+r), v(vB+64+r)))
    ep.add(salu('s_mov_b32', s(sT0), 0), salu('s_mov_b32', s(sT1), 16*2048))
    for n in range(8):
        qq, nt = divmod(n, 4)
        d = vB + 128 + 2*n
        ep.add(valu('v_cvt_pk_bf16_f32', v(d), v(vB+4*n), v(vB+4*n+1)), valu('v_cvt_pk_bf16_f32', v(d+1), v(vB+4*n+2), v(vB+4*n+3)))
        ep.add(bstore('buffer_store_dwordx2', v(d, 2), v(vOut), s(sOut, 4), s(sT0+qq), 32*nt))
    tr = [(pro, 0), (body, 0), (ep, 0)]
    resolve_waits(tr)
    e = hazards(tr, ('k2pro', 'k2epi'))
    if e: print("\n".join(e[:20])); raise SystemExit("hazards in k2")
    e = check_waits(tr, verbose=True)
    if e: print("\n".join(e[:20])); raise SystemExit("wait errors in k2")
    return "\n".join([pro.text(), stamp_text(1), body.text(), stamp_text(2), ep.text(), stamp_text(3), stamp_out(1) if OPT['stamps'] else "", "L_k2_end:", "    s_endpgm"])

HEADER = open(os.path.join(os.path.dirname(os.path.abspath(__file__)), "header.txt")).read()

def desc(name):
    return f""".p2align 6
.amdhsa_kernel {name}
  .amdhsa_next_free_vgpr 512
  .amdhsa_next_free_sgpr 102
  .amdhsa_accum_offset 256
  .amdhsa_group_segment_fixed_size 0
  .amdhsa_kernarg_size 104
  .amdhsa_user_sgpr_count 2
  .amdhsa_user_sgpr_kernarg_segment_ptr 1
  .amdhsa_system_sgpr_workgroup_id_x 1
.end_amdhsa_kernel
"""

def main(path):
    k1 = gen_k1(); k2 = gen_k2()
    n1 = NAME + "_kernel"; n2 = "oproj_kernel"
    txt = HEADER
    txt += f"; @launch kernel={n1} grid=(256,1,1) block=(256,1,1) lds=163840\n"
    txt += f"; @launch kernel={n2} grid=(256,1,1) block=(256,1,1) lds=131072\n"
    txt += f""".amdgcn_target "amdgcn-amd-amdhsa--gfx950"
.text
.globl {n1}
.p2align 8
.type {n1},@function
{n1}:
{k1}
.globl {n2}
.p2align 8
.type {n2},@function
{n2}:
{k2}
.section .rodata,"a"
{desc(n1)}{desc(n2)}"""
    open(path, "w").write(txt)

if __name__ == "__main__":
    for kv in sys.argv[2:]:
        k_, v_ = kv.split('=')
        OPT[k_] = int(v_) if v_.lstrip('-').isdigit() else v_
    main(sys.argv[1] if len(sys.argv) > 1 else f"cdna_kernels/{NAME}.s")
```

```python
import sys, os
sys.path.insert(0, os.path.dirname(os.path.abspath(__file__)))
from asmlib import *

NAME = "concat_heads__mha_block_cached__gqa_block_cached__near_ridge"
OPT = dict(kv_flags='nt', w_flags='', x_flags='', o_flags='sc1', a_flags='', b_flags='sc1', t_flags='', t_dist=0, wo_warm=1, stamps=False)

vKA, vVA, vKD, vVD, vOst = 8, 12, 20, 24, 26
vWA, vWD, vXA = 27, 29, 30
vNeg, vS, vKf, vVf, vP, vQ, vOnes, vL = 32, 48, 64, 80, 96, 160, 224, 228
vT = 244
vWf, vX = 64, 96
vXD, vXR = 32, 36
XS = (1, 2, 8, 9)
aO, aQ2 = 0, 128
sK, sV, sW, sX, sO = 8, 12, 16, 20, 24
sWv, sW4k = 28, 29
sKoff, sVoff, sKm0, sVm0 = 30, 31, 32, 33
sKrs, sVrs, sKd, sVd = 34, 35, 64, 65
sT0, sT1, sT2 = 66, 67, 68
sCnt, sItem, sOoff = 69, 70, 71
sC = 62
sThr = 72
sJ = 74
sMask = 78
sSlot = 73
sA, sB, sOut, sQ = 36, 40, 44, 48
sGp, sGc, sSig = 75, 76, 77
vGp, vGc, vOne, vPoll = 30, 31, 7, 6
SLOT = 16384
NSL = 5
KBASE, VBASE, WBASE = 0, NSL*SLOT, 3*SLOT
SCALE = 0x3E0293EE
import struct, math
SCALE = struct.unpack('<I', struct.pack('<f', math.log2(math.e)/math.sqrt(128.0)))[0]

def v(b, n=1): return F('v', b, n)
def a(b, n=1): return F('a', b, n)
def s(b, n=1): return F('s', b, n)

def stamp(n):
    if not OPT['stamps']: return []
    if OPT.get('lstamps') and n not in (0, 60): return []
    pre = [raw("s_mov_b32 s99, 0", 'misc'), raw("v_mov_b32 v254, 0", 'misc'), raw("v_mov_b32 v255, 0", 'misc')] if n == 0 else []
    return pre + [raw("s_memtime s[94:95]", 'misc'), raw("s_memrealtime s[96:97]", 'misc'),
            raw("s_mov_b32 s98, m0", 'misc'), raw("s_waitcnt lgkmcnt(0)", 'misc'),
            raw("s_mov_b32 m0, s99", 'misc'), raw("s_nop 3", 'misc'), raw("v_writelane_b32 v254, s94, m0", 'misc'),
            raw("v_writelane_b32 v255, s96, m0", 'misc'), raw("s_add_u32 s99, s99, 1", 'misc'), raw("s_mov_b32 m0, s98", 'misc'), raw("s_nop 1", 'misc')]
def stamp_text(n): return "\n".join("    " + i.t for i in stamp(n))
def stamp_out(region):
    return f"""    s_add_u32 s92, s60, {hex(64*1048576 + region*1048576)}
    s_addc_u32 s93, s61, 0
    s_mov_b32 s8, s92
    s_mov_b32 s9, s93
    s_mov_b32 s10, 1048576
    s_mov_b32 s11, 0x00020000
    s_lshl_b32 s92, s2, 2
    s_add_u32 s92, s92, s28
    s_lshl_b32 s92, s92, 9
    v_and_b32 v1, 63, v0
    v_lshlrev_b32 v1, 3, v1
    buffer_store_dwordx2 v[254:255], v1, s[8:11], s92 offen
"""

def k1_prologue():
    B = Block('pro')
    B.add(raw("s_cmp_ge_u32 s2, 256", 'salu'), raw("s_cbranch_scc1 L_k1_end", 'branch'))
    B.add(stamp(0))
    B.add(raw("s_load_dwordx16 s[36:51], s[0:1], 0"), raw("s_load_dwordx8 s[52:59], s[0:1], 64"),
          raw("s_load_dwordx2 s[60:61], s[0:1], 96"))
    B.add(valu('v_and_b32', 'v1', 63, 'v0'),
          valu('v_lshrrev_b32', 'v2', 6, 'v0'),
          valu('v_and_b32', 'v3', 15, 'v0'),
          valu('v_readfirstlane_b32', s(sWv), 'v2'),
          valu('v_lshrrev_b32', 'v4', 4, 'v1'),
          valu('v_bfe_u32', 'v5', 'v1', 2, 2),
          valu('v_and_b32', 'v6', 3, 'v1'))
    B.add(salu('s_and_b32', 's3', 's2', 7), salu('s_lshr_b32', 's4', 's2', 3),
          salu('s_lshr_b32', 's5', 's3', 2),
          salu('s_bfe_u32', 's6', 's3', 0x10001),
          salu('s_lshl_b32', 's6', 's6', 2), salu('s_and_b32', 's7', 's4', 3), salu('s_add_u32', 's6', 's6', 's7'),
          salu('s_and_b32', 's7', 's3', 1), salu('s_lshl_b32', 's7', 's7', 3), salu('s_lshr_b32', 's4', 's4', 2),
          salu('s_add_u32', 's7', 's7', 's4'),
          salu('s_lshl_b32', s(sW4k), s(sWv), 12))
    B.add(valu('v_xor_b32', 'v7', 'v4', 'v3'), valu('v_lshlrev_b32', 'v7', 4, 'v7'),
          valu('v_lshl_add_u32', v(vKA), 'v3', 8, 'v7'))
    for q in range(1, 4): B.add(valu('v_xor_b32', v(vKA+q), 64*q, v(vKA)))
    B.add(valu('v_lshl_add_u32', 'v7', 'v4', 2, 'v5'),
          valu('v_and_b32', v(vT), 7, 'v7'), valu('v_lshlrev_b32', v(vT), 5, v(vT)),
          valu('v_lshl_add_u32', v(vT), 'v7', 8, v(vT)),
          valu('v_lshl_add_u32', v(vT), 'v6', 3, v(vT)))
    for dt in range(8):
        B.add(valu('v_xor_b32', v(vVA+dt), 32*dt, v(vT)))
    for dt in range(8):
        B.add(valu('v_add_u32', v(vVA+dt), VBASE + SLOT, v(vVA+dt)))
    B.add(valu('v_lshlrev_b32', 'v7', 12, 'v2'), valu('v_lshl_add_u32', 'v7', 'v4', 8, 'v7'))
    for m in range(4):
        B.add(valu('v_add_u32', v(vT), 4*m, 'v4'), valu('v_xor_b32', v(vT), v(vT), 'v3'),
              valu('v_lshl_add_u32', v(vKD+m), v(vT), 4, 'v7'))
    for m in range(2):
        B.add(valu('v_add_u32', v(vT), 4*m, 'v4'), valu('v_lshlrev_b32', v(vT), 1, v(vT)),
              valu('v_xor_b32', v(vT), v(vT), 'v3'), valu('v_lshl_add_u32', v(vVD+m), v(vT), 4, 'v7'))
    B.add(valu('v_lshlrev_b32', 'v7', 19, 'v2'), valu('v_lshl_add_u32', v(vOst), 'v1', 4, 'v7'))
    B.add(valu('v_lshl_add_u32', 'v7', 'v4', 3, 'v5'), valu('v_lshlrev_b32', 'v7', 7, 'v7'),
          valu('v_lshrrev_b32', v(vT), 1, 'v5'), valu('v_lshlrev_b32', v(vT), 2, v(vT)),
          valu('v_xor_b32', v(vT), v(vT), 'v6'),
          valu('v_lshl_add_u32', 'v7', v(vT), 4, 'v7'),
          valu('v_add_u32', v(vWA), WBASE, 'v7'), valu('v_xor_b32', 'v7', 64, 'v7'),
          valu('v_add_u32', v(vWA+1), WBASE, 'v7'))
    B.add(valu('v_lshrrev_b32', 'v7', 3, 'v1'),
          valu('v_bfe_u32', v(vT), 'v1', 4, 1), valu('v_lshlrev_b32', v(vT), 2, v(vT)),
          valu('v_and_b32', v(vT+1), 7, 'v1'), valu('v_xor_b32', v(vT), v(vT), v(vT+1)),
          valu('v_lshl_add_u32', 'v7', 'v2', 5, 'v7'), valu('v_lshlrev_b32', 'v7', 13, 'v7'),
          valu('v_lshl_add_u32', v(vWD), v(vT), 4, 'v7'))
    B.add(valu('v_lshlrev_b32', 'v7', 6, 'v2'), valu('v_add_u32', 'v7', 'v7', 'v4'), valu('v_lshlrev_b32', 'v7', 10, 'v7'))
    for m in range(4):
        B.add(valu('v_add_u32', v(vT), 4*m, 'v4'), valu('v_xor_b32', v(vT), v(vT), 'v3'),
              valu('v_lshl_add_u32', v(vXD+m), v(vT), 4, 'v7'))
        if m: B.add(valu('v_add_u32', v(vXD+m), 4096*m, v(vXD+m)))
    B.add(valu('v_lshlrev_b32', 'v7', 12, 'v2'))
    for q in range(4):
        B.add(valu('v_add_u32', v(vXR+q), v(vKA+q), 'v7'))
    for q in range(4):
        B.add(valu('v_add_u32', v(vXR+4+q), XS[2]*SLOT, v(vXR+q)), valu('v_add_u32', v(vXR+q), XS[0]*SLOT, v(vXR+q)))
    for q in range(4): B.add(valu('v_mov_b32', v(vOnes+q), '0x3f803f80'))
    B.add(raw("s_waitcnt lgkmcnt(0)", 'misc'))
    B.add(salu('s_cmp_eq_u32', 's5', 0),
          salu('s_cselect_b64', s(sX, 2), 's[36:37]', 's[46:47]'),
          salu('s_cselect_b64', s(sK, 2), 's[38:39]', 's[48:49]'),
          salu('s_cselect_b64', s(sV, 2), 's[40:41]', 's[50:51]'),
          salu('s_cselect_b64', s(sW, 2), 's[42:43]', 's[52:53]'))
    B.add(salu('s_lshl_b32', s(sT0), 's6', 18),
          salu('s_add_u32', s(sX), s(sX), s(sT0)), salu('s_addc_u32', s(sX+1), s(sX+1), 0),
          salu('s_mov_b32', s(sX+2), 262144), salu('s_mov_b32', s(sX+3), '0x00020000'),
          salu('s_lshl_b32', s(sT0), 's7', 9),
          salu('s_add_u32', s(sW), s(sW), s(sT0)), salu('s_addc_u32', s(sW+1), s(sW+1), 0),
          salu('s_sub_u32', s(sW+2), 4194304, s(sT0)), salu('s_mov_b32', s(sW+3), '0x00020000'),
          salu('s_lshl_b32', s(sT0), 's6', 4), salu('s_add_u32', s(sT0), s(sT0), 's7'), salu('s_lshl_b32', s(sT0), s(sT0), 19),
          salu('s_add_u32', s(sK), s(sK), s(sT0)), salu('s_addc_u32', s(sK+1), s(sK+1), 0),
          salu('s_mov_b32', s(sK+2), 524288), salu('s_mov_b32', s(sK+3), '0x00020000'),
          salu('s_add_u32', s(sV), s(sV), s(sT0)), salu('s_addc_u32', s(sV+1), s(sV+1), 0),
          salu('s_mov_b32', s(sV+2), 524288), salu('s_mov_b32', s(sV+3), '0x00020000'),
          salu('s_lshl_b32', s(sT0), 's5', 3), salu('s_add_u32', s(sT0), s(sT0), 's6'), salu('s_lshl_b32', s(sT0), s(sT0), 21),
          salu('s_add_u32', s(sO), 's60', s(sT0)), salu('s_addc_u32', s(sO+1), 's61', 0),
          salu('s_mov_b32', s(sO+2), 2097152), salu('s_mov_b32', s(sO+3), '0x00020000'),
          salu('s_cmp_eq_u32', 's5', 0), salu('s_cselect_b64', 's[80:81]', 's[44:45]', 's[54:55]'),
          salu('s_lshl_b32', s(sT0), 's6', 4), salu('s_add_u32', s(sT0), s(sT0), 's7'), salu('s_lshl_b32', s(sT0), s(sT0), 15),
          salu('s_add_u32', 's80', 's80', s(sT0)), salu('s_addc_u32', 's81', 's81', 0),
          salu('s_mov_b32', 's82', 32768), salu('s_mov_b32', 's83', '0x00020000'),
          salu('s_lshl_b32', s(sOoff), 's7', 13),
          salu('s_mov_b32', s(sC), hex(SCALE)), salu('s_mov_b32', s(sC+1), hex(SCALE)),
          salu('s_mov_b32', s(sThr), '0x5f800000'),
          salu('s_mov_b32', s(sItem), 0), salu('s_mov_b32', s(sSlot), SLOT))
    B.add(salu('s_cmp_eq_u32', 's5', 0), salu('s_cselect_b64', 's[48:49]', 's[44:45]', 's[54:55]'),
          salu('s_lshl_b32', s(sT0), 's4', 7),
          salu('s_add_u32', s(sA), 's48', s(sT0)), salu('s_addc_u32', s(sA+1), 's49', 0),
          salu('s_sub_u32', s(sA+2), 4194304, s(sT0)), salu('s_mov_b32', s(sA+3), '0x00020000'),
          salu('s_and_b32', s(sT1), 's3', 3), salu('s_lshl_b32', s(sT1), s(sT1), 2),
          salu('s_bfe_u32', s(sT2), 's2', 0x20003), salu('s_add_u32', s(sT1), s(sT1), s(sT2)),
          salu('s_lshl_b32', s(sT2), 's5', 4), salu('s_add_u32', s(sT2), s(sT2), s(sT1)),
          salu('s_lshr_b32', s(sGc), s(sT2), 1), salu('s_lshl_b32', s(sGc), s(sGc), 2),
          salu('s_lshl_b32', s(sT2), s(sT2), 20),
          salu('s_add_u32', s(sB), 's60', s(sT2)), salu('s_addc_u32', s(sB+1), 's61', 0),
          salu('s_mov_b32', s(sB+2), 1048576), salu('s_mov_b32', s(sB+3), '0x00020000'),
          salu('s_lshl_b32', s(sT1), s(sT1), 18), salu('s_add_u32', s(sT0), s(sT0), s(sT1)),
          salu('s_lshl_b32', s(sT1), 's5', 10), salu('s_add_u32', s(sT0), s(sT0), s(sT1)),
          salu('s_add_u32', s(sOut), 's56', s(sT0)), salu('s_addc_u32', s(sOut+1), 's57', 0),
          salu('s_sub_u32', s(sOut+2), 4194304, s(sT0)), salu('s_mov_b32', s(sOut+3), '0x00020000'),
          salu('s_lshl_b32', s(sGp), 's5', 3), salu('s_add_u32', s(sGp), s(sGp), 's6'), salu('s_lshl_b32', s(sGp), s(sGp), 2),
          salu('s_mov_b32', s(sSig), 99))
    B.add(valu('v_mov_b32', v(vGp), s(sGp)), valu('v_mov_b32', v(vGc), s(sGc)), valu('v_mov_b32', v(vOne), 1))
    return B

C1, C2 = 128, 192
def signal(off, lab):
    L = [raw("s_mov_b64 exec, 1", 'salu', w=['exec']),
            Ins(f"global_atomic_add v{vGp}, v{vOne}, s[58:59] offset:{off} sc1", 'vmem', [f"v{vGp}", f"v{vOne}", 's58', 's59'], [], tag='SIG'),
            raw("s_mov_b64 exec, -1", 'salu', w=['exec']), label(lab)]
    for i in L: i.meta = dict(i.meta, cond=True)
    return L
def poll(off, d, tag):
    return Ins(f"global_load_dword v{d}, v{vGc}, s[58:59] offset:{off} sc1", 'vmem', [f"v{vGc}", 's58', 's59'], [f"v{d}"], tag=tag)
def spin_text(name, off, back):
    return f'''{name}:
    s_mov_b32 s57, 0x40000
{name}_l:
    s_sleep 4
    global_load_dword v{vPoll}, v{vGc}, s[58:59] offset:{off} sc1
    s_waitcnt vmcnt(0)
    v_readfirstlane_b32 s56, v{vPoll}
    s_nop 3
    s_cmp_ge_u32 s56, 16
    s_cbranch_scc1 {back}
    s_sub_u32 s57, s57, 1
    s_cbranch_scc0 {name}_l
    s_branch {back}'''

def xdma(beta, m):
    kg, j = divmod(beta, 4)
    su = [salu('s_add_u32', 'm0', s(sW4k), XS[beta % 4]*SLOT + 1024*m)]
    if m == 0: su.append(salu('s_mov_b32', s(sJ), 16384*j + 256*kg))
    return su, bdma(v(vXD+m), s(sX, 4), s(sJ), 0, tag=('X', beta), flags=OPT['x_flags'])
def xread(beta, ks):
    kg, j = divmod(beta, 4); sg = beta % 4
    d = vX + (kg % 2)*64 + (j*4+ks)*4
    return dsr('ds_read_b128', v(d, 4), v(vXR + 4*(sg//2) + ks), SLOT*(sg % 2))
def wdma(c, m):
    kg, dq = divmod(c, 4)
    return [salu('s_add_u32', 'm0', s(sW4k), WBASE + SLOT*(c % 4) + 1024*m),
            salu('s_mov_b32', s(sT0 + (m & 1)), kg*128*8192 + m*65536 + dq*128)], \
           bdma(v(vWD), s(sW, 4), s(sT0 + (m & 1)), 0, tag=('W', c), flags=OPT['w_flags'])
def kv_static(kind, n):
    if kind == 'K':
        setup = [salu('s_add_u32', 'm0', s(sW4k), KBASE + SLOT*(n % NSL)), salu('s_mov_b32', s(sT2), n*SLOT)]
        return setup, [bdma(v(vKD+m), s(sK, 4), s(sT2), 1024*m, tag=('K', n), flags=OPT['kv_flags']) for m in range(4)]
    setup = [salu('s_add_u32', 'm0', s(sW4k), VBASE + SLOT*((n+2) % NSL)), salu('s_mov_b32', s(sT2), n*SLOT)]
    return setup, [bdma(v(vVD+(m & 1)), s(sV, 4), s(sT2), 1024*m, tag=('V', n), flags=OPT['kv_flags']) for m in range(4)]
def wread(T, n):
    c, tp = divmod(T, 4); sl, e = divmod(tp, 2); ks, hh = divmod(n, 2)
    d = vWf + (T % 2)*16 + ks*4 + hh*2
    return dsr('ds_read_b64_tr_b16', v(d, 2), v(vWA+sl), SLOT*(c % 4) + 4096*ks + 512*hh + 8*e)

def k1_qproj():
    pre = Block('qpre')
    for m in range(4):
        su, d = wdma(0, m); pre.add(su, d)
    for beta in range(4):
        for m in range(4):
            su, d = xdma(beta, m); pre.add(su, d)
    for c in range(1, 4):
        for m in range(4):
            su, d = wdma(c, m); pre.add(su, d)
    for beta in range(4):
        pre.add(waitvm((lambda b_: lambda ctx: [('X', b_)])(beta)))
        if beta == 0:
            pre.add(barrier()); pre.add(stamp(1))
            for n in range(8): pre.add(wread(0, n))
        if beta == 1: pre.add(waitlg(R('v', vWf, 16)))
        if beta == 3: pre.add(waitlg(R('v', vX, 16)))
        for ks in range(4): pre.add(xread(beta, ks))
    pre.add(waitlg(R('v', vX, 64)))
    S = Sched()
    for T in range(64):
        c, tp = divmod(T, 4); kg, dq = divmod(c, 4); sl, e = divmod(tp, 2)
        head = dq >> 1; ss = 2*(dq & 1) + sl
        for j in range(4):
            acc = a(128*head + ((j*4+ss)*2+e)*4, 4)
            for ks in range(4):
                S.add_mfma(mfma(acc, v(vWf + (T % 2)*16 + ks*4, 4), v(vX + (kg % 2)*64 + (j*4+ks)*4, 4),
                                '0' if (kg == 0 and ks == 0) else acc))
        if T + 1 < 64:
            for n in range(8): S.put(16*T + 4 + n, wread(T+1, n), 'mem')
            S.put(16*T + 15, waitlg(R('v', vWf + ((T+1) % 2)*16, 8)), 'free')
        if T: S.put(16*T + 1, waitlg(R('v', vWf + (T % 2)*16 + 8, 8)), 'free')
    x_dma = {4: 0, 5: 0, 6: 0, 7: 1, 8: 3, 9: 3, 10: 4, 11: 5, 12: 6, 13: 7, 14: 8, 15: 9}
    x_rd = {4: 2, 5: 2, 6: 3, 7: 3, 8: 5, 9: 6, 10: 7, 11: 7, 12: 8, 13: 9, 14: 10, 15: 11}
    kv = OPT.get('kv_sched') or {7: [('K', 0)], 8: [('V', 0)], 9: [('K', 1)], 10: [('K', 2)], 11: [('V', 1)], 12: [('V', 2)],
                                 13: [('K', 3)], 14: [('K', 4)], 15: [('V', 3)]}
    for c in range(16):
        b = 64*c
        rb = [be for be, cc in x_rd.items() if cc == c]
        g = b
        for be in rb:
            for ks in range(4):
                S.put(g, xread(be, ks), 'mem'); g += 1
                if g % 16 == 4: g += 8
        def slots():
            g = b + 16
            while True:
                if g % 16 in (12, 14, 0, 2) or (g % 16 in (13, 1, 3) and dense): yield g
                g += 1
        todo = []
        if 4 <= c + 3 < 16:
            for m in range(4): todo.append(wdma(c+3, m))
        for be in [be for be, cc in x_dma.items() if cc == c]:
            for m in range(4): todo.append(xdma(be, m))
        for kind, n in kv.get(c, []):
            su, ds_ = kv_static(kind, n)
            for m, d in enumerate(ds_): todo.append((su if m == 0 else [], d))
        dense = len(todo) > 9
        sl_ = slots()
        for su, d in todo:
            g = next(sl_)
            assert g < b + 51 or g > b + 52
            for i_ in su: S.put(g-1 if 'm0' in i_.w else g, i_, 'valu' if 'm0' in i_.w else 'free')
            S.put(g, d, 'mem')
        tags = [('W', c+1)] if c < 15 else [('K', 0)]
        tags += [('X', be) for be, cc in x_rd.items() if cc == c+1]
        S.put(b + 51, waitvm((lambda t: lambda ctx: t)(tags)), 'free')
        if OPT.get('qstamps'):
            for i_ in stamp(50): S.put(b + 51, i_, 'free')
        S.put(b + 51, barrier(), 'free')
        if OPT.get('qstamps'):
            for i_ in stamp(50): S.put(b + 51, i_, 'free')
    body = Block('qproj', S.flatten(0, 1024))
    cv = Block('qcvt')
    cv.add(stamp(2))
    for q in range(4): cv.add(dsr('ds_read_b128', v(vKf+4*q, 4), v(vKA+q), 0))
    tmp = [48, 56, 80, 88]
    for head in (1, 0):
        for f in range(16):
            t = tmp[f % 4]
            for r in range(8): cv.add(valu('v_accvgpr_read_b32', v(t+r), a(128*head + 8*f + r)))
            for r in range(0, 8, 2): cv.add(valu('v_pk_mul_f32', v(t+r, 2), v(t+r, 2), s(sC, 2)))
            for r in range(4):
                d = vQ + 4*f + r if head == 0 else t + r
                cv.add(valu('v_cvt_pk_bf16_f32', v(d), v(t+2*r), v(t+2*r+1)))
            if head == 1:
                for r in range(4): cv.add(valu('v_accvgpr_write_b32', a(aQ2 + 4*f + r), v(t+r)))
    if OPT['wo_warm'] == 1: cv.add(wo_touch())
    cv.add(salu('s_mov_b32', s(sKoff), 5*SLOT), salu('s_mov_b32', s(sVoff), 4*SLOT),
           salu('s_add_u32', s(sKm0), s(sW4k), KBASE), salu('s_add_u32', s(sVm0), s(sW4k), VBASE + SLOT),
           salu('s_mov_b32', s(sKrs), 0), salu('s_mov_b32', s(sVrs), SLOT))
    return pre, body, cv

def qk(j, q, first_c, kbuf=vKf):
    D = v(vS + 4*j, 4)
    return mfma(D, v(kbuf + 4*q, 4), v(vQ + (4*j+q)*4, 4), first_c if q == 0 else D)
def Preg(par, u, j): return vP + par*32 + (u*4+j)*4
def sm_ops(par, t, j):
    ex = [valu('v_exp_f32', v(vS+4*j+r), v(vS+4*j+r)) for r in range(4)]
    p = Preg(par, t//2, j) + (t % 2)*2
    cv = [valu('v_cvt_pk_bf16_f32', v(p+h), v(vS+4*j+2*h), v(vS+4*j+2*h+1)) for h in range(2)]
    return ex, cv
def kread(t, q, kbuf=vKf): return dsr('ds_read_b128', v(kbuf+4*q, 4), v(vKA+q), 4096*t)
def vread(dt, u, e):
    return dsr('ds_read_b64_tr_b16', v(vVf + (dt % 2)*8 + u*4 + e*2, 2), v(vVA+dt), 8192*u + 4096*e)
def ring_read_adv(srs, sd):
    return [salu('s_add_u32', s(srs), s(srs), SLOT), salu('s_cmp_eq_u32', s(srs), NSL*SLOT),
            salu('s_cselect_b32', s(sd), hex((SLOT - NSL*SLOT) & 0xffffffff), s(sSlot)), salu('s_cselect_b32', s(srs), 0, s(srs))]
def ring_dma_adv(sm0, soff, lim):
    return [salu('s_add_u32', s(soff), s(soff), SLOT), salu('s_add_u32', s(sm0), s(sm0), SLOT),
            salu('s_cmp_ge_u32', s(sm0), lim), salu('s_cselect_b32', s(sT0), NSL*SLOT, 0), salu('s_sub_u32', s(sm0), s(sm0), s(sT0))]
def kv_dyn(kind, m):
    if kind == 'K':
        return bdma(v(vKD+m), s(sK, 4), s(sKoff), 1024*m, tag=lambda i: ('K', i+4), flags=OPT['kv_flags'])
    return bdma(v(vVD+(m & 1)), s(sV, 4), s(sVoff), 1024*m, tag=lambda i: ('V', i+3), flags=OPT['kv_flags'])

def k1_m0():
    B = Block('m0')
    B.add(waitlg(R('v', vKf, 16)))
    for j in range(4):
        for q in range(4): B.add(qk(j, q, '0'))
    m = vT; c = vT+4
    for j in range(4): B.add(valu('v_max3_f32', v(m+j), v(vS+4*j), v(vS+4*j+1), v(vS+4*j+2)))
    for j in range(4): B.add(valu('v_max_f32', v(m+j), v(m+j), v(vS+4*j+3)))
    for op in ('v_permlane16_swap_b32', 'v_permlane32_swap_b32'):
        for j in range(4): B.add(valu('v_mov_b32', v(c+j), v(m+j)))
        for j in range(4): B.add(valu(op, v(m+j), v(c+j)))
        for j in range(4): B.add(valu('v_max_f32', v(m+j), v(m+j), v(c+j)))
    for j in range(4):
        for r in range(4): B.add(valu('v_sub_f32', v(vNeg+4*j+r), 0, v(m+j)))
    return B

def head_ops(S, par_prev):
    ex, cv = sm_ops(par_prev, 3, 3)
    S.put(0, ex[1], 'valu'); S.put(1, cv[0], 'valu'); S.put(2, ex[2], 'valu'); S.put(4, ex[3], 'valu'); S.put(5, cv[1], 'valu')

def k1_iter0():
    S = Sched()
    bufB = vP + 32
    for t in range(4):
        kb = vKf if t % 2 == 0 else bufB
        for j in range(4):
            for q in range(4): S.add_mfma(qk(j, q, v(vNeg+4*j, 4), kb))
        if t < 3:
            nb = bufB if t % 2 == 0 else vKf
            for q in range(4): S.put(16*t + 1 + 2*q, kread(t+1, q, nb), 'mem')
            S.put(16*t + 15, waitlg(R('v', nb, 16)), 'free')
    for t in range(4):
        for j in range(4):
            ex, cv = sm_ops(0, t, j)
            g0 = 16*t + 4*j + 7
            if (t, j) == (3, 3):
                S.put(63, ex[0], 'valu'); continue
            seq = [(g0, ex[0]), (g0+1, ex[1]), (g0+2, ex[2]), (g0+2, cv[0]), (g0+3, ex[3]), (g0+4, cv[1])]
            for g, i in seq: S.put(min(g, 63), i, 'valu')
    for n, i in enumerate(ring_read_adv(sKrs, sKd)): S.put(2+n, i, 'free')
    for n, i in enumerate(ring_read_adv(sVrs, sVd)): S.put(8+n, i, 'free')
    for dt in range(8): S.put(16 + 2*dt, valu('v_add_u32', v(vVA+dt), s(sVd), v(vVA+dt)), 'valu')
    for q in range(4): S.put(42 + q, valu('v_add_u32', v(vKA+q), s(sKd), v(vKA+q)), 'valu')
    S.put(49, waitvm(lambda i: [('K', i+1), ('V', i)]), 'free'); S.put(49, barrier(), 'free')
    for q in range(4): S.put(51 + 2*q, kread(0, q), 'mem')
    S.put(62, waitlg(R('v', vKf, 16)), 'free') if False else None
    for n, (u, e) in enumerate(((0, 0), (0, 1), (1, 0))): S.put(59 + 2*n if n < 2 else 62, vread(0, u, e), 'mem')
    S.put(63, waitlg(R('v', vKf, 16)), 'free')
    return Block('iter0', S.flatten(0, 64))

def pv_group(S, p, par_prev, first):
    for dt in (2*p, 2*p+1):
        for j in range(4):
            D = a(aO + (dt*4+j)*4, 4)
            for u in range(2):
                S.add_mfma(mfma(D, v(vVf + (dt % 2)*8 + u*4, 4), v(Preg(par_prev, u, j), 4), '0' if (first and u == 0) else D))
    D = v(vL + 4*p, 4)
    for u in range(2):
        S.add_mfma(mfma(D, v(vOnes, 4), v(Preg(par_prev, u, p), 4), '0' if (first and u == 0) else D))

def k1_body(name, par, first=False, loop_end=None):
    S = Sched()
    for p in range(4):
        for j in range(4):
            for q in range(4): S.add_mfma(qk(j, q, v(vNeg+4*j, 4)))
        pv_group(S, p, 1-par, first)
    head_ops(S, 1-par)
    for t in range(4):
        b = 34*t
        for j in range(4):
            ex, cv = sm_ops(par, t, j)
            g0 = b + 8 + 8*j
            for g, i in [(g0, ex[0]), (g0+2, ex[1]), (g0+3, cv[0]), (g0+4, ex[2]), (g0+6, ex[3]), (g0+7, cv[1])]:
                if g < 136: S.put(g, i, 'valu')
        for q in range(4): S.put(b + 19 + 2*q, kread((t+1) % 4, q), 'mem')
        S.put(b + 32, waitlg(R('v', vKf, 16)), 'free')
        S.put(b + 1, vread(2*t, 1, 1), 'mem')
        for n, (u, e) in enumerate(((0, 0), (0, 1), (1, 0), (1, 1))): S.put(b + 3 + 2*n, vread(2*t+1, u, e), 'mem')
        S.put(b + 14, waitlg(R('v', vVf, 16)), 'free')
        for n, (u, e) in enumerate(((0, 0), (0, 1), (1, 0))): S.put(b + 29 + 2*n, vread((2*t+2) % 8, u, e), 'mem')
        for n in range(2): S.put(b + 21 + 4*n, valu('v_add_u32', v(vVA+2*t+n), s(sVd), v(vVA+2*t+n)), 'valu')
        kind = 'K' if t < 2 else 'V'
        for n in range(2): S.put(b + 11 + 16*n, kv_dyn(kind, 2*(t % 2) + n), 'mem')
    for n, g in enumerate((3, 7, 9, 13)): S.put(102 + g, valu('v_add_u32', v(vKA+n), s(sKd), v(vKA+n)), 'valu')
    S.put(10, salu('s_mov_b32', 'm0', s(sKm0)), 'free')
    S.put(68 + 10, salu('s_mov_b32', 'm0', s(sVm0)), 'free')
    for n, i in enumerate(ring_read_adv(sVrs, sVd)): S.put(2 + 2*n, i, 'free')
    for n, i in enumerate(ring_read_adv(sKrs, sKd)): S.put(36 + 2*n, i, 'free')
    for n, i in enumerate(ring_dma_adv(sKm0, sKoff, NSL*SLOT)): S.put(64 + 2*n - (0 if n < 1 else 0) + (24 if False else 0), i, 'free') if False else None
    for n, i in enumerate(ring_dma_adv(sKm0, sKoff, NSL*SLOT)): S.put(84 + 2*n, i, 'free')
    if OPT.get('lstamps'):
        for i_ in stamp(60): S.put(102 + 17, i_, 'free')
    S.put(102 + 17, waitvm(lambda i: [('K', i+1), ('V', i)] + ([('O', 0)] if i == 19 else [])), 'free'); S.put(102 + 17, barrier(), 'free')
    if loop_end:
        S.put(102 + 18, salu('s_cmp_eq_u32', s(sCnt), s(sSig)), 'free')
        S.put(102 + 20, raw("s_cbranch_scc0 L_nosig1", 'branch', r=['scc']), 'free')
        for i_ in signal(C1, 'L_nosig1'): S.put(102 + 20, i_, 'free')
    if OPT.get('lstamps'):
        for i_ in stamp(60): S.put(102 + 17, i_, 'free')
    adv = ring_dma_adv(sVm0, sVoff, 2*NSL*SLOT)
    for n, i in enumerate(adv): S.put(102 + 28 + n, i, 'free')
    ins = S.flatten(0, 136)
    B = Block(name, ins)
    if loop_end:
        B.add(salu('s_sub_u32', s(sCnt), s(sCnt), 1), raw(f"s_cbranch_scc0 {loop_end}", 'branch', r=['scc']))
    B.sched = S
    return B

def k1_drain():
    S = Sched()
    for p in range(4): pv_group(S, p, 1, False)
    head_ops(S, 1)
    B = Block('drain')
    B.add(vread(0, 1, 1))
    for (u, e) in ((0, 0), (0, 1), (1, 0), (1, 1)): B.add(vread(1, u, e))
    B.add(waitlg(R('v', vVf, 8)))
    for p in range(4):
        b = 18*p
        S.put(b + 7, waitlg(R('v', vVf + 8, 8)), 'free')
        if p < 3:
            for n, (u, e) in enumerate(((0, 0), (0, 1), (1, 0), (1, 1))):
                S.put(b + 8 + n, vread(2*p+2, u, e), 'mem')
                S.put(b + 16 + n, vread(2*p+3, u, e), 'mem')
            S.put(b + 17, waitlg(R('v', vVf, 8)), 'free')
    S.put(12, salu('s_mov_b32', 'm0', s(sKm0)), 'free')
    for m in range(4): S.put(13 + 6*m if m else 13, kv_dyn('K', m), 'mem') if False else None
    for m, g in enumerate((13, 15, 23, 25)): S.put(g, kv_dyn('K', m), 'mem')
    S.put(30, salu('s_mov_b32', 'm0', s(sVm0)), 'free')
    for m, g in enumerate((31, 33, 41, 43)): S.put(g, kv_dyn('V', m), 'mem')
    S.put(51, poll(C1, vPoll, 'P1'), 'mem')
    for n, i in enumerate(ring_dma_adv(sKm0, sKoff, NSL*SLOT)): S.put(46 + n, i, 'free')
    for n, i in enumerate(ring_dma_adv(sVm0, sVoff, 2*NSL*SLOT)): S.put(56 + n, i, 'free')
    B.add(S.flatten(0, 72))
    return B

def k1_check():
    B = Block('chk')
    B.add(valu('v_add_f32', v(vT), v(vL), v(vL+4)), valu('v_add_f32', v(vT+1), v(vL+8), v(vL+12)),
          valu('v_add_f32', v(vT), v(vT), v(vT+1)),
          valu('v_cmp_nge_f32', 'vcc', s(sThr), v(vT)),
          salu('s_cmp_lg_u64', 'vcc', 0),
          raw("s_cbranch_scc1 L_slow", 'branch', r=['scc']))
    return B

def epi_groups(item):
    rl = vT
    G = [[valu('v_rcp_f32', v(rl+2*j), v(vL+4*j)) for j in range(4)]]
    n = 0
    for j in range(4):
        for sp in range(4):
            g = []
            if sp == 0: g.append(salu('s_add_u32', s(sT2), s(sOoff), 131072*j))
            t = vP + (n % 4)*8; d = vP + 32 + (n % 8)*4; n += 1
            for h in range(2):
                for r in range(4): g.append(valu('v_accvgpr_read_b32', v(t+4*h+r), a(aO + ((2*sp+h)*4+j)*4 + r)))
            for r in range(0, 8, 2): g.append(valu('v_pk_mul_f32', v(t+r, 2), v(t+r, 2), v(rl+2*j, 2), extra='op_sel_hi:[1,0]'))
            for r in range(4): g.append(valu('v_cvt_pk_bf16_f32', v(d+r), v(t+2*r), v(t+2*r+1)))
            g.append(bstore('buffer_store_dwordx4', v(d, 4), v(vOst), s(sO, 4), s(sT2), 1024*sp, tag=('O', item), flags=OPT['o_flags']))
            G.append(g)
    return G

def k1_epi():
    B = Block('epi')
    for g in epi_groups(0): B.add(g)
    return B

def k1_next():
    B = Block('next')
    for r in range(64): B.add(valu('v_accvgpr_read_b32', v(vQ+r), a(aQ2+r)))
    B.add(salu('s_mov_b32', s(sItem), 1), salu('s_add_u32', s(sOoff), s(sOoff), 4096),
          salu('s_cmp_eq_u32', s(sWv), 0), salu('s_cselect_b32', s(sSig), 6, 99))
    B.add(raw("s_branch L_item", 'branch'))
    return B

def k1_slow():
    kf, Sx, Pp = vP, vP+32, vS
    m, l, al, t = vNeg, vNeg+4, vNeg+8, vNeg+12
    ak, av = vT+8, vT+9
    pk = vVf
    pre = Block('slow_pre')
    pre.add(valu('v_and_b32', 'v1', 63, 'v0'), valu('v_and_b32', 'v3', 15, 'v0'), valu('v_lshrrev_b32', 'v4', 4, 'v1'),
            valu('v_lshlrev_b32', v(ak), 8, 'v3'), valu('v_lshl_add_u32', v(ak), 'v4', 4, v(ak)),
            valu('v_lshlrev_b32', v(av), 10, 'v4'), valu('v_lshl_add_u32', v(av), 'v3', 1, v(av)))
    for j in range(4): pre.add(valu('v_mov_b32', v(m+j), '0xff800000'), valu('v_mov_b32', v(l+j), 0))
    for r in range(128): pre.add(valu('v_accvgpr_write_b32', a(aO+r), 0))
    pre.add(salu('s_lshl_b32', s(sT0), s(sItem), 18), salu('s_add_u32', s(sT1), s(sT0), 4096), salu('s_mov_b32', s(sCnt), 31))
    L = Block('slow_loop')
    for tt in range(2):
        for q in range(4):
            L.add(bload('buffer_load_dwordx4', v(kf+(tt*4+q)*4, 4), v(ak), s(sK, 4), s(sT0+tt), 64*q))
    L.add(waitvm0())
    for tt in range(2):
        for j in range(4):
            D = v(Sx + (j*2+tt)*4, 4)
            for q in range(4): L.add(mfma(D, v(kf+(tt*4+q)*4, 4), v(vQ+(4*j+q)*4, 4), '0' if q == 0 else D))
    for j in range(4):
        x = Sx + 8*j
        L.add(valu('v_max3_f32', v(t), v(x), v(x+1), v(x+2)), valu('v_max3_f32', v(t), v(t), v(x+3), v(x+4)),
              valu('v_max3_f32', v(t), v(t), v(x+5), v(x+6)), valu('v_max3_f32', v(t), v(t), v(x+7), v(m+j)))
        for op in ('v_permlane16_swap_b32', 'v_permlane32_swap_b32'):
            L.add(valu('v_mov_b32', v(t+1), v(t)), valu(op, v(t), v(t+1)), valu('v_max_f32', v(t), v(t), v(t+1)))
        L.add(valu('v_sub_f32', v(al+j), v(m+j), v(t)), valu('v_exp_f32', v(al+j), v(al+j)), valu('v_mov_b32', v(m+j), v(t)))
        L.add(valu('v_mul_f32', v(l+j), v(l+j), v(al+j)))
        for r in range(8):
            L.add(valu('v_sub_f32', v(x+r), v(x+r), v(t)), valu('v_exp_f32', v(x+r), v(x+r)))
        for r in range(8): L.add(valu('v_add_f32', v(l+j), v(l+j), v(x+r)))
        for r in range(4): L.add(valu('v_cvt_pk_bf16_f32', v(Pp+4*j+r), v(x+2*r), v(x+2*r+1)))
    for half in range(2):
        for d4 in range(4):
            dt = half*4 + d4
            for jj in range(8):
                L.add(bload('buffer_load_ushort', v(kf+d4*8+jj), v(av), s(sV, 4), s(sT0+(jj//4)), (jj % 4)*256 + 32*dt))
        if half == 0:
            for dt in range(8):
                for j in range(4):
                    for r in range(4):
                        x = aO + (dt*4+j)*4 + r
                        L.add(valu('v_accvgpr_read_b32', v(t+r), a(x)))
                    for r in range(4): L.add(valu('v_mul_f32', v(t+r), v(t+r), v(al+j)))
                    for r in range(4):
                        x = aO + (dt*4+j)*4 + r
                        L.add(valu('v_accvgpr_write_b32', a(x), v(t+r)))
        L.add(waitvm0())
        for d4 in range(4):
            dt = half*4 + d4
            for r in range(4): L.add(valu('v_lshl_or_b32', v(pk+4*d4+r), v(kf+d4*8+2*r+1), 16, v(kf+d4*8+2*r)))
        for d4 in range(4):
            dt = half*4 + d4
            for j in range(4):
                D = a(aO + (dt*4+j)*4, 4)
                L.add(mfma(D, v(pk+4*d4, 4), v(Pp+4*j, 4), D))
    L.add(salu('s_add_u32', s(sT0), s(sT0), 8192), salu('s_add_u32', s(sT1), s(sT1), 8192),
          salu('s_sub_u32', s(sCnt), s(sCnt), 1), raw("s_cbranch_scc0 L_slow_loop", 'branch', r=['scc']))
    post = Block('slow_post')
    for j in range(4):
        for op in ('v_permlane16_swap_b32', 'v_permlane32_swap_b32'):
            post.add(valu('v_mov_b32', v(t), v(l+j)), valu(op, v(l+j), v(t)), valu('v_add_f32', v(l+j), v(l+j), v(t)))
        post.add(valu('v_mov_b32', v(vL+4*j), v(l+j)))
    post.add(nop(7), raw("s_branch L_epi", 'branch'))
    return pre, L, post

def wo_touch():
    sWo = 80
    return [valu('v_and_b32', 'v1', 63, 'v0'), valu('v_lshlrev_b32', 'v1', 7, 'v1'),
            salu('s_lshl_b32', s(sT2), s(sWv), 13),
            bload('buffer_load_dword', 'v2', 'v1', s(sWo, 4), s(sT2), 0, tag='WO')]

def check_flag(spin, back):
    return [valu('v_readfirstlane_b32', 's56', v(vPoll)), salu('s_cmp_ge_u32', 's56', 16),
            raw(f"s_cbranch_scc0 {spin}", 'branch', r=['scc']), label(back)]

def phase3():
    vAA, vDW, vBO, vOut, vRW, vRR = 8, 16, 17, 18, 19, 21
    BB = (32, 160, 96)
    aA, aC = 0, 128
    PS = ((0, 1), (2, 4), (5, 6))
    NST = 16
    def hh(st): return 2*((st//2) % 4) + st//8
    def bl(st, jq, u):
        d = BB[st % 3] + (jq*2+u)*4
        return bload('buffer_load_dwordx4', v(d, 4), v(vBO), s(sB, 4), s(sQ+jq), (2*(st % 2)+u)*1024, tag=('B', st), flags=OPT['b_flags'])
    def q_setup(st): return [salu('s_mov_b32', s(sQ+jq), jq*131072 + hh(st)*4096) for jq in range(8)]
    def ad(st, m):
        u, mm = divmod(m, 4)
        return [salu('s_add_u32', 'm0', s(sW4k), PS[st % 3][u]*SLOT + 1024*mm),
                salu('s_mov_b32', s(sT0 + (m & 1)), (hh(st)*128 + (st % 2)*64 + m*8)*1024)], \
               bdma(v(vDW), s(sA, 4), s(sT0 + (m & 1)), 0, tag=('A', st), flags=OPT['a_flags'])
    def ar(st, nt, n):
        u, e = divmod(n, 2)
        sl = PS[st % 3][u]
        d = aA + (st % 2)*32 + (nt*2+u)*4 + e*2
        return dsr('ds_read_b64_tr_b16', a(d, 2), v(vAA + (sl//4)*4 + nt), (sl % 4)*SLOT + e*2048)
    E = Block('epi2')
    E.add(waitvm(lambda c: ['P1']), check_flag('L_spin1', 'L_back1'))
    E.add(valu('v_and_b32', 'v1', 63, 'v0'), valu('v_lshrrev_b32', 'v2', 6, 'v0'), valu('v_and_b32', 'v3', 15, 'v0'),
          valu('v_lshrrev_b32', 'v4', 4, 'v1'))
    E.add(valu('v_lshrrev_b32', 'v22', 3, 'v1'), valu('v_bfe_u32', 'v23', 'v1', 4, 2), valu('v_lshlrev_b32', 'v23', 1, 'v23'),
          valu('v_and_b32', 'v24', 7, 'v1'), valu('v_xor_b32', 'v23', 'v23', 'v24'),
          valu('v_lshl_add_u32', 'v22', 'v2', 10, 'v22'), valu('v_lshlrev_b32', 'v22', 10, 'v22'),
          valu('v_lshl_add_u32', v(vDW), 'v23', 4, 'v22'))
    E.add(valu('v_lshlrev_b32', 'v22', 15, 'v2'), valu('v_lshl_add_u32', v(vBO), 'v1', 4, 'v22'))
    for m in range(8):
        su, d = ad(0, m); E.add(su, d)
    E.add(q_setup(0))
    for jq in range(8):
        for u in range(2): E.add(bl(0, jq, u))
    late = []
    for m in range(8):
        su, d = ad(1, m); late.append(su + [d])
    for jq in range(8):
        for u in range(2): late.append([bl(1, jq, u)])
    for n, g in enumerate(epi_groups(1)):
        E.add(g)
        if n == 12: E.add(waitvm(lambda c: [('A', 0)]))
        if n >= 5:
            for _ in range(2):
                if late: E.add(late.pop(0))
    assert not late
    E.add(valu('v_bfe_u32', 'v5', 'v1', 2, 2), valu('v_lshl_add_u32', 'v22', 'v4', 2, 'v5'),
          valu('v_bfe_u32', 'v23', 'v22', 1, 2), valu('v_lshlrev_b32', 'v23', 5, 'v23'),
          valu('v_lshl_add_u32', 'v23', 'v22', 7, 'v23'), valu('v_and_b32', 'v24', 3, 'v1'), valu('v_lshl_add_u32', 'v23', 'v24', 3, 'v23'),
          valu('v_lshl_add_u32', 'v23', 'v2', 12, 'v23'))
    for nt in range(4): E.add(valu('v_xor_b32', v(vAA+nt), 32*nt, 'v23'))
    for nt in range(4): E.add(valu('v_add_u32', v(vAA+4+nt), 4*SLOT, v(vAA+nt)))
    E.add(waitvm(lambda c: [('A', 0)]))
    for nt in range(4):
        for n in range(4): E.add(ar(0, nt, n))
        if nt == 2: E.add(waitlg(R('a', aA, 8)))
    E.add(valu('v_lshl_add_u32', 'v22', 'v2', 5, 'v3'), valu('v_lshlrev_b32', 'v22', 11, 'v22'),
          valu('v_lshl_add_u32', v(vOut), 'v4', 3, 'v22'),
          valu('v_lshlrev_b32', 'v22', 4, 'v1'), valu('v_lshl_add_u32', v(vRW), 'v2', 12, 'v22'), valu('v_add_u32', v(vRW+1), 4*SLOT, v(vRW)),
          valu('v_lshl_add_u32', v(vRR), 'v2', 15, 'v22'))
    E.add(waitvm(lambda c: [('B', 0)]), waitlg(R('a', aA, 32)))
    S = Sched()
    for st in range(NST):
        b = 64*st
        order = [(nt, jq) for nt in range(4) for jq in range(8)] if st < NST-1 else [(nt, jq) for jq in range(8) for nt in range(4)]
        for nt, jq in order:
            D = a(aC + (nt*8+jq)*4, 4)
            for u in range(2):
                g = S.add_mfma(mfma(D, a(aA + (st % 2)*32 + (nt*2+u)*4, 4), v(BB[st % 3] + (jq*2+u)*4, 4),
                                    '0' if (st == 0 and u == 0) else D))
            if st == NST-1:
                S.put(min(g + 7, 64*NST - 1), dsw('ds_write_b128', v(vRW + jq//4), D, (jq % 4)*SLOT + nt*1024), 'mem')
                if (jq*4+nt) % 8 == 7 and g + 9 < 64*NST: S.put(g + 9, raw("s_waitcnt lgkmcnt(4)", 'wait'), 'free'); S.f[g+9]['free'][-1].meta = {'lg': 4}
        if st == 4: S.put(b + 17, poll(C2, vPoll, 'P2'), 'mem')
        if st == 6:
            S.put(b + 16, waitvm(lambda c: ['P2']), 'free')
            ck = check_flag('L_spin2', 'L_back2')
            S.put(b + 16, ck[0], 'valu'); S.put(b + 18, ck[1], 'valu'); S.put(b + 19, ck[2], 'valu'); S.put(b + 19, ck[3], 'valu')
        if st + 2 < NST:
            g = b
            for m in range(8):
                su, d = ad(st+2, m)
                S.put(g, su[0], 'free'); S.put(g+1, su[1], 'free'); S.put(g+1, d, 'mem'); g += 2
            if (st+2) % 2 == 0:
                for n, i in enumerate(q_setup(st+2)): S.put(b + 16 + n//2, i, 'free')
            for n, (jq, u) in enumerate((jq, u) for jq in range(8) for u in range(2)):
                S.put(b + 21 + 2*n, bl(st+2, jq, u), 'mem')
        if st + 1 < NST:
            S.put(b + 30, waitvm((lambda x: lambda c: [('A', x)])(st+1)), 'free')
            for n in range(16): S.put(b + 30 + 2*n, ar(st+1, n//4, n % 4), 'mem')
            S.put(b + 54, waitlg(R('a', aA + ((st+1) % 2)*32, 8)), 'free')
            S.put(b + 63, waitvm((lambda x: lambda c: [('B', x), ('O', 1)])(st+1)), 'free')
            S.put(b + 63, waitlg(R('a', aA + ((st+1) % 2)*32, 32)), 'free')
            if st == 0:
                S.put(b + 63, barrier(), 'free')
                S.put(b + 63, salu('s_cmp_eq_u32', s(sWv), 0), 'free')
                S.put(b + 63, raw("s_cbranch_scc0 L_nosig2", 'branch', r=['scc']), 'free')
                for i_ in signal(C2, 'L_nosig2'): S.put(b + 63, i_, 'free')
            if OPT.get('qstamps'):
                for i_ in stamp(50): S.put(b + 63, i_, 'free')
    body = Block('p3body', S.flatten(0, 64*NST))
    ep = Block('p3epi')
    ep.add(waitlg0(), barrier())
    vB = 32
    def rd(i):
        src, n = divmod(i, 8); qq, nt = divmod(n, 4)
        return dsr('ds_read_b128', v(vB + 4*i, 4), v(vRR), qq*SLOT + src*4096 + nt*1024)
    for i in range(14): ep.add(rd(i))
    for i in range(14, 32 + 6):
        if i < 32: ep.add(waitlg(R('v', vB + 4*(i-14), 4)), rd(i))
        k = i - 6
        if 8 <= k < 24:
            ep.add(waitlg(R('v', vB + 4*k, 4)))
            for r in range(4): ep.add(valu('v_add_f32', v(vB+4*(k % 8)+r), v(vB+4*(k % 8)+r), v(vB+4*k+r)))
    ep.add(salu('s_mov_b32', s(sT0), 0), salu('s_mov_b32', s(sT1), 16*2048), waitlg0())
    for n in range(8):
        qq, nt = divmod(n, 4)
        d = vB + 128 + 2*n
        for r in range(4): ep.add(valu('v_add_f32', v(vB+4*n+r), v(vB+4*n+r), v(vB+96+4*n+r)))
        ep.add(valu('v_cvt_pk_bf16_f32', v(d), v(vB+4*n), v(vB+4*n+1)), valu('v_cvt_pk_bf16_f32', v(d+1), v(vB+4*n+2), v(vB+4*n+3)))
        ep.add(bstore('buffer_store_dwordx2', v(d, 2), v(vOut), s(sOut, 4), s(sT0+qq), 32*nt))
    return E, body, ep

def gen_k1():
    pro = k1_prologue(); qpre, qproj, qcvt = k1_qproj()
    m0 = k1_m0(); it0 = k1_iter0()
    b1 = k1_body('b1f', 1, first=True); be = k1_body('beven', 0); bo = k1_body('bodd', 1, loop_end='L_loop')
    setc = Block('setc', [salu('s_mov_b32', s(sCnt), 6)])
    dr = k1_drain(); chk = k1_check(); epi = k1_epi(); nx = k1_next()
    sel = Block('sel', [salu('s_cmp_lg_u32', s(sItem), 0), raw("s_cbranch_scc1 L_epi2", 'branch', r=['scc'])])
    spre, sloop, spost = k1_slow()
    e2, p3, p3e = phase3()
    def item(base, slow):
        t = [(m0, base), (it0, base), (b1, base+1), (setc, 0)]
        for i in range(2, 16, 2): t += [(be, base+i), (bo, base+i+1)]
        t += [(dr, base+16), (chk, 0)]
        if slow: t += [(spre, 0), (sloop, 0), (sloop, 0), (spost, 0)]
        t += [(sel, 0)]
        t += [(epi, 0), (nx, 0)] if base == 0 else [(e2, 0), (p3, 0), (p3e, 0)]
        return t
    head = [(pro, 0), (qpre, 0), (qproj, 0), (qcvt, 0)]
    tr_fast = head + item(0, False) + item(16, False)
    tr_slow = head + item(0, True) + item(16, True)
    resolve_waits(tr_fast)
    fix = ('pro', 'qpre', 'qcvt', 'm0', 'chk', 'epi', 'next', 'slow_pre', 'slow_loop', 'slow_post', 'iter0', 'drain', 'epi2', 'p3epi', 'p3body')
    for tr in (tr_fast, tr_slow):
        e = hazards(tr, fix)
        if e: print("\n".join(e[:20])); raise SystemExit("hazards in k1")
    for tr in (tr_fast, tr_slow):
        e = check_waits(tr, verbose=True)
        if e: print("\n".join(e[:20])); raise SystemExit("wait errors in k1")
    over = [(g, be.sched.load(g)) for g in range(136) if be.sched.load(g)[1] > 2 or be.sched.load(g)[0] > 1]
    print("k1 body over-full gaps:", over, " nops in p3body:", sum(1 for i in p3.ins if i.k == 'nop'))
    out = []
    out += [pro.text(), qpre.text(), qproj.text(), qcvt.text()]
    out += ["L_item:", stamp_text(3), m0.text(), stamp_text(4), it0.text(), stamp_text(5), b1.text(), setc.text(), stamp_text(6), ".p2align 6", "L_loop:", be.text(), bo.text(), stamp_text(7), dr.text(), chk.text(),
            "L_epi:", stamp_text(8), sel.text(), epi.text(), stamp_text(9), nx.text()]
    out += ["L_slow:", spre.text(), "L_slow_loop:", sloop.text(), spost.text()]
    out += [spin_text('L_spin1', C1, 'L_back1'), spin_text('L_spin2', C2, 'L_back2')]
    out += ["L_epi2:", e2.text(), stamp_text(10), p3.text(), stamp_text(11), p3e.text(), stamp_text(12)]
    if OPT['stamps']:
        out += [stamp_out(0)]
    out += ["L_k1_end:", "    s_endpgm"]
    return "\n".join(out)

HEADER = open(os.path.join(os.path.dirname(os.path.abspath(__file__)), "header.txt")).read()

def desc(name):
    return f""".p2align 6
.amdhsa_kernel {name}
  .amdhsa_next_free_vgpr 512
  .amdhsa_next_free_sgpr 102
  .amdhsa_accum_offset 256
  .amdhsa_group_segment_fixed_size 0
  .amdhsa_kernarg_size 104
  .amdhsa_user_sgpr_count 2
  .amdhsa_user_sgpr_kernarg_segment_ptr 1
  .amdhsa_system_sgpr_workgroup_id_x 1
.end_amdhsa_kernel
"""

def main(path):
    k1 = gen_k1()
    n1 = NAME + "_kernel"
    txt = HEADER
    txt += f"; @launch grid=(256,1,1) block=(256,1,1) lds=163840\n"
    txt += f""".amdgcn_target "amdgcn-amd-amdhsa--gfx950"
.text
.globl {n1}
.p2align 8
.type {n1},@function
{n1}:
{k1}
.section .rodata,"a"
{desc(n1)}"""
    open(path, "w").write(txt)

if __name__ == "__main__":
    for kv in sys.argv[2:]:
        k_, v_ = kv.split('=')
        OPT[k_] = int(v_) if v_.lstrip('-').isdigit() else v_
    main(sys.argv[1] if len(sys.argv) > 1 else f"cdna_kernels/{NAME}.s")
```

```python
import sys, os
sys.path.insert(0, os.path.dirname(os.path.abspath(__file__)))
from asmlib import *

NAME = "concat_heads__mha_block_cached__gqa_block_cached__near_ridge"
OPT = dict(kv_flags='nt', w_flags='', x_flags='', o_flags='sc1', a_flags='', b_flags='sc1', t_flags='', t_dist=0, wo_warm=1, st_it0=8, stamps=False)

vKA, vVA, vKD, vVD, vOst = 8, 12, 20, 24, 26
vWA, vWD, vXA = 27, 29, 30
vNeg, vS, vKf, vVf, vP, vQ, vOnes, vL = 32, 48, 64, 80, 96, 160, 224, 228
vT = 244
vWf, vX = 64, 96
vXD, vXR = 32, 36
XS = (1, 2, 8, 9)
aO, aQ2 = 0, 128
sK, sV, sW, sX, sO = 8, 12, 16, 20, 24
sWv, sW4k = 28, 29
sKoff, sVoff, sKm0, sVm0 = 30, 31, 32, 33
sKrs, sVrs, sKd, sVd = 34, 35, 64, 65
sT0, sT1, sT2 = 66, 67, 68
sCnt, sItem, sOoff = 69, 70, 71
sC = 62
sThr = 72
sJ = 74
sMask = 78
sSlot = 73
sA, sB, sOut, sQ = 36, 40, 44, 48
sGp, sGc, sSig = 75, 76, 77
sJO = 84
aPk = 192
vGp, vGc, vOne, vPoll = 30, 31, 7, 6
SLOT = 16384
NSL = 5
KBASE, VBASE, WBASE = 0, NSL*SLOT, 3*SLOT
SCALE = 0x3E0293EE
import struct, math
SCALE = struct.unpack('<I', struct.pack('<f', math.log2(math.e)/math.sqrt(128.0)))[0]

def v(b, n=1): return F('v', b, n)
def a(b, n=1): return F('a', b, n)
def s(b, n=1): return F('s', b, n)

def stamp(n):
    if not OPT['stamps']: return []
    if OPT.get('lstamps') and n not in (0, 60): return []
    if OPT.get('dbgout') and n in (4, 5, 9): return []
    pre = [raw("s_mov_b32 s99, 0", 'misc'), raw("v_mov_b32 v254, 0", 'misc'), raw("v_mov_b32 v255, 0", 'misc')] if n == 0 else []
    return pre + [raw("s_memtime s[94:95]", 'misc'), raw("s_memrealtime s[96:97]", 'misc'),
            raw("s_mov_b32 s98, m0", 'misc'), raw("s_waitcnt lgkmcnt(0)", 'misc'),
            raw("s_mov_b32 m0, s99", 'misc'), raw("s_nop 3", 'misc'), raw("v_writelane_b32 v254, s94, m0", 'misc'),
            raw("v_writelane_b32 v255, s96, m0", 'misc'), raw("s_add_u32 s99, s99, 1", 'misc'), raw("s_mov_b32 m0, s98", 'misc'), raw("s_nop 1", 'misc')]
def stamp_text(n): return "\n".join("    " + i.t for i in stamp(n))
def stamp_out(region):
    return f"""    s_add_u32 s92, s60, {hex(64*1048576 + region*1048576)}
    s_addc_u32 s93, s61, 0
    s_mov_b32 s8, s92
    s_mov_b32 s9, s93
    s_mov_b32 s10, 1048576
    s_mov_b32 s11, 0x00020000
    s_lshl_b32 s92, s2, 2
    s_add_u32 s92, s92, s28
    s_lshl_b32 s92, s92, 9
    v_and_b32 v1, 63, v0
    v_lshlrev_b32 v1, 3, v1
    buffer_store_dwordx2 v[254:255], v1, s[8:11], s92 offen
"""

def k1_prologue():
    B = Block('pro')
    B.add(raw("s_cmp_ge_u32 s2, 256", 'salu'), raw("s_cbranch_scc1 L_k1_end", 'branch'))
    B.add(stamp(0))
    B.add(raw("s_load_dwordx16 s[36:51], s[0:1], 0"), raw("s_load_dwordx8 s[52:59], s[0:1], 64"),
          raw("s_load_dwordx2 s[60:61], s[0:1], 96"))
    B.add(valu('v_and_b32', 'v1', 63, 'v0'),
          valu('v_lshrrev_b32', 'v2', 6, 'v0'),
          valu('v_and_b32', 'v3', 15, 'v0'),
          valu('v_readfirstlane_b32', s(sWv), 'v2'),
          valu('v_lshrrev_b32', 'v4', 4, 'v1'),
          valu('v_bfe_u32', 'v5', 'v1', 2, 2),
          valu('v_and_b32', 'v6', 3, 'v1'))
    B.add(salu('s_and_b32', 's3', 's2', 7), salu('s_lshr_b32', 's4', 's2', 3),
          salu('s_lshr_b32', 's5', 's3', 2),
          salu('s_bfe_u32', 's6', 's3', 0x10001),
          salu('s_lshl_b32', 's6', 's6', 2), salu('s_and_b32', 's7', 's4', 3), salu('s_add_u32', 's6', 's6', 's7'),
          salu('s_and_b32', 's7', 's3', 1), salu('s_lshl_b32', 's7', 's7', 3), salu('s_lshr_b32', 's4', 's4', 2),
          salu('s_add_u32', 's7', 's7', 's4'),
          salu('s_lshl_b32', s(sW4k), s(sWv), 12))
    B.add(valu('v_xor_b32', 'v7', 'v4', 'v3'), valu('v_lshlrev_b32', 'v7', 4, 'v7'),
          valu('v_lshl_add_u32', v(vKA), 'v3', 8, 'v7'))
    for q in range(1, 4): B.add(valu('v_xor_b32', v(vKA+q), 64*q, v(vKA)))
    B.add(valu('v_lshl_add_u32', 'v7', 'v4', 2, 'v5'),
          valu('v_and_b32', v(vT), 7, 'v7'), valu('v_lshlrev_b32', v(vT), 5, v(vT)),
          valu('v_lshl_add_u32', v(vT), 'v7', 8, v(vT)),
          valu('v_lshl_add_u32', v(vT), 'v6', 3, v(vT)))
    for dt in range(8):
        B.add(valu('v_xor_b32', v(vVA+dt), 32*dt, v(vT)))
    for dt in range(8):
        B.add(valu('v_add_u32', v(vVA+dt), VBASE + SLOT, v(vVA+dt)))
    B.add(valu('v_lshlrev_b32', 'v7', 12, 'v2'), valu('v_lshl_add_u32', 'v7', 'v4', 8, 'v7'))
    for m in range(4):
        B.add(valu('v_add_u32', v(vT), 4*m, 'v4'), valu('v_xor_b32', v(vT), v(vT), 'v3'),
              valu('v_lshl_add_u32', v(vKD+m), v(vT), 4, 'v7'))
    for m in range(2):
        B.add(valu('v_add_u32', v(vT), 4*m, 'v4'), valu('v_lshlrev_b32', v(vT), 1, v(vT)),
              valu('v_xor_b32', v(vT), v(vT), 'v3'), valu('v_lshl_add_u32', v(vVD+m), v(vT), 4, 'v7'))
    B.add(valu('v_lshlrev_b32', 'v7', 19, 'v2'), valu('v_lshl_add_u32', v(vOst), 'v1', 4, 'v7'))
    B.add(valu('v_lshl_add_u32', 'v7', 'v4', 3, 'v5'), valu('v_lshlrev_b32', 'v7', 7, 'v7'),
          valu('v_lshrrev_b32', v(vT), 1, 'v5'), valu('v_lshlrev_b32', v(vT), 2, v(vT)),
          valu('v_xor_b32', v(vT), v(vT), 'v6'),
          valu('v_lshl_add_u32', 'v7', v(vT), 4, 'v7'),
          valu('v_add_u32', v(vWA), WBASE, 'v7'), valu('v_xor_b32', 'v7', 64, 'v7'),
          valu('v_add_u32', v(vWA+1), WBASE, 'v7'))
    B.add(valu('v_lshrrev_b32', 'v7', 3, 'v1'),
          valu('v_bfe_u32', v(vT), 'v1', 4, 1), valu('v_lshlrev_b32', v(vT), 2, v(vT)),
          valu('v_and_b32', v(vT+1), 7, 'v1'), valu('v_xor_b32', v(vT), v(vT), v(vT+1)),
          valu('v_lshl_add_u32', 'v7', 'v2', 5, 'v7'), valu('v_lshlrev_b32', 'v7', 13, 'v7'),
          valu('v_lshl_add_u32', v(vWD), v(vT), 4, 'v7'))
    B.add(valu('v_lshlrev_b32', 'v7', 6, 'v2'), valu('v_add_u32', 'v7', 'v7', 'v4'), valu('v_lshlrev_b32', 'v7', 10, 'v7'))
    for m in range(4):
        B.add(valu('v_add_u32', v(vT), 4*m, 'v4'), valu('v_xor_b32', v(vT), v(vT), 'v3'),
              valu('v_lshl_add_u32', v(vXD+m), v(vT), 4, 'v7'))
        if m: B.add(valu('v_add_u32', v(vXD+m), 4096*m, v(vXD+m)))
    B.add(valu('v_lshlrev_b32', 'v7', 12, 'v2'))
    for q in range(4):
        B.add(valu('v_add_u32', v(vXR+q), v(vKA+q), 'v7'))
    for q in range(4):
        B.add(valu('v_add_u32', v(vXR+4+q), XS[2]*SLOT, v(vXR+q)), valu('v_add_u32', v(vXR+q), XS[0]*SLOT, v(vXR+q)))
    for q in range(4): B.add(valu('v_mov_b32', v(vOnes+q), '0x3f803f80'))
    B.add(raw("s_waitcnt lgkmcnt(0)", 'misc'))
    B.add(salu('s_cmp_eq_u32', 's5', 0),
          salu('s_cselect_b64', s(sX, 2), 's[36:37]', 's[46:47]'),
          salu('s_cselect_b64', s(sK, 2), 's[38:39]', 's[48:49]'),
          salu('s_cselect_b64', s(sV, 2), 's[40:41]', 's[50:51]'),
          salu('s_cselect_b64', s(sW, 2), 's[42:43]', 's[52:53]'))
    B.add(salu('s_lshl_b32', s(sT0), 's6', 18),
          salu('s_add_u32', s(sX), s(sX), s(sT0)), salu('s_addc_u32', s(sX+1), s(sX+1), 0),
          salu('s_mov_b32', s(sX+2), 262144), salu('s_mov_b32', s(sX+3), '0x00020000'),
          salu('s_lshl_b32', s(sT0), 's7', 9),
          salu('s_add_u32', s(sW), s(sW), s(sT0)), salu('s_addc_u32', s(sW+1), s(sW+1), 0),
          salu('s_sub_u32', s(sW+2), 4194304, s(sT0)), salu('s_mov_b32', s(sW+3), '0x00020000'),
          salu('s_lshl_b32', s(sT0), 's6', 4), salu('s_add_u32', s(sT0), s(sT0), 's7'), salu('s_lshl_b32', s(sT0), s(sT0), 19),
          salu('s_add_u32', s(sK), s(sK), s(sT0)), salu('s_addc_u32', s(sK+1), s(sK+1), 0),
          salu('s_mov_b32', s(sK+2), 524288), salu('s_mov_b32', s(sK+3), '0x00020000'),
          salu('s_add_u32', s(sV), s(sV), s(sT0)), salu('s_addc_u32', s(sV+1), s(sV+1), 0),
          salu('s_mov_b32', s(sV+2), 524288), salu('s_mov_b32', s(sV+3), '0x00020000'),
          salu('s_lshl_b32', s(sT0), 's5', 3), salu('s_add_u32', s(sT0), s(sT0), 's6'), salu('s_lshl_b32', s(sT0), s(sT0), 21),
          salu('s_lshl_b32', s(sOoff), 's7', 13), salu('s_add_u32', s(sT0), s(sT0), s(sOoff)),
          salu('s_add_u32', s(sO), 's60', s(sT0)), salu('s_addc_u32', s(sO+1), 's61', 0),
          salu('s_mov_b32', s(sO+2), 0), salu('s_mov_b32', s(sO+3), '0x00020000'),
          salu('s_sub_u32', s(sOoff), 2097152, s(sOoff)),
          salu('s_cmp_eq_u32', 's5', 0), salu('s_cselect_b64', 's[80:81]', 's[44:45]', 's[54:55]'),
          salu('s_lshl_b32', s(sT0), 's6', 4), salu('s_add_u32', s(sT0), s(sT0), 's7'), salu('s_lshl_b32', s(sT0), s(sT0), 15),
          salu('s_add_u32', 's80', 's80', s(sT0)), salu('s_addc_u32', 's81', 's81', 0),
          salu('s_mov_b32', 's82', 32768), salu('s_mov_b32', 's83', '0x00020000'),
          salu('s_mov_b32', s(sC), hex(SCALE)), salu('s_mov_b32', s(sC+1), hex(SCALE)),
          salu('s_mov_b32', s(sThr), '0x5f800000'),
          salu('s_mov_b32', s(sItem), 0), salu('s_mov_b32', s(sSlot), SLOT))
    B.add(salu('s_cmp_eq_u32', 's5', 0), salu('s_cselect_b64', 's[48:49]', 's[44:45]', 's[54:55]'),
          salu('s_lshl_b32', s(sT0), 's4', 7),
          salu('s_add_u32', s(sA), 's48', s(sT0)), salu('s_addc_u32', s(sA+1), 's49', 0),
          salu('s_sub_u32', s(sA+2), 4194304, s(sT0)), salu('s_mov_b32', s(sA+3), '0x00020000'),
          salu('s_and_b32', s(sT1), 's3', 3), salu('s_lshl_b32', s(sT1), s(sT1), 2),
          salu('s_bfe_u32', s(sT2), 's2', 0x20003), salu('s_add_u32', s(sT1), s(sT1), s(sT2)),
          salu('s_lshl_b32', s(sT2), 's5', 4), salu('s_add_u32', s(sT2), s(sT2), s(sT1)),
          salu('s_lshr_b32', s(sGc), s(sT2), 1), salu('s_lshl_b32', s(sGc), s(sGc), 2),
          salu('s_lshl_b32', s(sT2), s(sT2), 20),
          salu('s_add_u32', s(sB), 's60', s(sT2)), salu('s_addc_u32', s(sB+1), 's61', 0),
          salu('s_mov_b32', s(sB+2), 1048576), salu('s_mov_b32', s(sB+3), '0x00020000'),
          salu('s_lshl_b32', s(sT1), s(sT1), 18), salu('s_add_u32', s(sT0), s(sT0), s(sT1)),
          salu('s_lshl_b32', s(sT1), 's5', 10), salu('s_add_u32', s(sT0), s(sT0), s(sT1)),
          salu('s_add_u32', s(sOut), 's56', s(sT0)), salu('s_addc_u32', s(sOut+1), 's57', 0),
          salu('s_sub_u32', s(sOut+2), 4194304, s(sT0)), salu('s_mov_b32', s(sOut+3), '0x00020000'),
          salu('s_lshl_b32', s(sGp), 's5', 3), salu('s_add_u32', s(sGp), s(sGp), 's6'), salu('s_lshl_b32', s(sGp), s(sGp), 2),
          salu('s_mov_b32', s(sSig), 99))
    for j in range(4): B.add(salu('s_mov_b32', s(sJO+j), 131072*j))
    B.add(valu('v_mov_b32', v(vGp), s(sGp)), valu('v_mov_b32', v(vGc), s(sGc)), valu('v_mov_b32', v(vOne), 1))
    return B

SIGPASS = 5
C1, C2 = 128, 192
def signal(off, lab):
    L = [raw("s_mov_b64 exec, 1", 'salu', w=['exec']),
            Ins(f"global_atomic_add v{vGp}, v{vOne}, s[58:59] offset:{off} sc1", 'vmem', [f"v{vGp}", f"v{vOne}", 's58', 's59'], [], tag='SIG'),
            raw("s_mov_b64 exec, -1", 'salu', w=['exec']), label(lab)]
    for i in L: i.meta = dict(i.meta, cond=True)
    return L
def poll(off, d, tag):
    return Ins(f"global_load_dword v{d}, v{vGc}, s[58:59] offset:{off} sc1", 'vmem', [f"v{vGc}", 's58', 's59'], [f"v{d}"], tag=tag)
def spin_text(name, off, back):
    return f'''{name}:
    s_mov_b32 s57, 0x40000
{name}_l:
    s_sleep 4
    global_load_dword v{vPoll}, v{vGc}, s[58:59] offset:{off} sc1
    s_waitcnt vmcnt(0)
    v_readfirstlane_b32 s56, v{vPoll}
    s_nop 3
    s_cmp_ge_u32 s56, 16
    s_cbranch_scc1 {back}
    s_sub_u32 s57, s57, 1
    s_cbranch_scc0 {name}_l
    s_branch {back}'''

def xdma(beta, m):
    kg, j = divmod(beta, 4)
    su = [salu('s_add_u32', 'm0', s(sW4k), XS[beta % 4]*SLOT + 1024*m)]
    if m == 0: su.append(salu('s_mov_b32', s(sJ), 16384*j + 256*kg))
    return su, bdma(v(vXD+m), s(sX, 4), s(sJ), 0, tag=('X', beta), flags=OPT['x_flags'])
def xread(beta, ks):
    kg, j = divmod(beta, 4); sg = beta % 4
    d = vX + (kg % 2)*64 + (j*4+ks)*4
    return dsr('ds_read_b128', v(d, 4), v(vXR + 4*(sg//2) + ks), SLOT*(sg % 2))
def wdma(c, m):
    kg, dq = divmod(c, 4)
    return [salu('s_add_u32', 'm0', s(sW4k), WBASE + SLOT*(c % 4) + 1024*m),
            salu('s_mov_b32', s(sT0 + (m & 1)), kg*128*8192 + m*65536 + dq*128)], \
           bdma(v(vWD), s(sW, 4), s(sT0 + (m & 1)), 0, tag=('W', c), flags=OPT['w_flags'])
def kv_static(kind, n):
    if kind == 'K':
        setup = [salu('s_add_u32', 'm0', s(sW4k), KBASE + SLOT*(n % NSL)), salu('s_mov_b32', s(sT2), n*SLOT)]
        return setup, [bdma(v(vKD+m), s(sK, 4), s(sT2), 1024*m, tag=('K', n), flags=OPT['kv_flags']) for m in range(4)]
    setup = [salu('s_add_u32', 'm0', s(sW4k), VBASE + SLOT*((n+2) % NSL)), salu('s_mov_b32', s(sT2), n*SLOT)]
    return setup, [bdma(v(vVD+(m & 1)), s(sV, 4), s(sT2), 1024*m, tag=('V', n), flags=OPT['kv_flags']) for m in range(4)]
def wread(T, n):
    c, tp = divmod(T, 4); sl, e = divmod(tp, 2); ks, hh = divmod(n, 2)
    d = vWf + (T % 2)*16 + ks*4 + hh*2
    return dsr('ds_read_b64_tr_b16', v(d, 2), v(vWA+sl), SLOT*(c % 4) + 4096*ks + 512*hh + 8*e)

def k1_qproj():
    pre = Block('qpre')
    for m in range(4):
        su, d = wdma(0, m); pre.add(su, d)
    for beta in range(4):
        for m in range(4):
            su, d = xdma(beta, m); pre.add(su, d)
    for c in range(1, 4):
        for m in range(4):
            su, d = wdma(c, m); pre.add(su, d)
    for beta in range(4):
        pre.add(waitvm((lambda b_: lambda ctx: [('X', b_)])(beta)))
        if beta == 0:
            pre.add(barrier()); pre.add(stamp(1))
            for n in range(8): pre.add(wread(0, n))
        if beta == 1: pre.add(waitlg(R('v', vWf, 16)))
        if beta == 3: pre.add(waitlg(R('v', vX, 16)))
        for ks in range(4): pre.add(xread(beta, ks))
    pre.add(waitlg(R('v', vX, 64)))
    S = Sched()
    for T in range(64):
        c, tp = divmod(T, 4); kg, dq = divmod(c, 4); sl, e = divmod(tp, 2)
        head = dq >> 1; ss = 2*(dq & 1) + sl
        for j in range(4):
            acc = a(128*head + ((j*4+ss)*2+e)*4, 4)
            for ks in range(4):
                S.add_mfma(mfma(acc, v(vWf + (T % 2)*16 + ks*4, 4), v(vX + (kg % 2)*64 + (j*4+ks)*4, 4),
                                '0' if (kg == 0 and ks == 0) else acc))
        if T + 1 < 64:
            for n in range(8): S.put(16*T + 4 + n, wread(T+1, n), 'mem')
            S.put(16*T + 15, waitlg(R('v', vWf + ((T+1) % 2)*16, 8)), 'free')
        if T: S.put(16*T + 1, waitlg(R('v', vWf + (T % 2)*16 + 8, 8)), 'free')
    x_dma = {4: 0, 5: 0, 6: 0, 7: 1, 8: 3, 9: 3, 10: 4, 11: 5, 12: 6, 13: 7, 14: 8, 15: 9}
    x_rd = {4: 2, 5: 2, 6: 3, 7: 3, 8: 5, 9: 6, 10: 7, 11: 7, 12: 8, 13: 9, 14: 10, 15: 11}
    kv = OPT.get('kv_sched') or {7: [('K', 0)], 8: [('V', 0)], 9: [('K', 1)], 10: [('K', 2)], 11: [('V', 1)], 12: [('V', 2)],
                                 13: [('K', 3)], 14: [('K', 4)], 15: [('V', 3)]}
    for c in range(16):
        b = 64*c
        rb = [be for be, cc in x_rd.items() if cc == c]
        g = b
        for be in rb:
            for ks in range(4):
                S.put(g, xread(be, ks), 'mem'); g += 1
                if g % 16 == 4: g += 8
        def slots():
            g = b + 16
            while True:
                if g % 16 in (12, 14, 0, 2) or (g % 16 in (13, 1, 3) and dense): yield g
                g += 1
        todo = []
        if 4 <= c + 3 < 16:
            for m in range(4): todo.append(wdma(c+3, m))
        for be in [be for be, cc in x_dma.items() if cc == c]:
            for m in range(4): todo.append(xdma(be, m))
        for kind, n in kv.get(c, []):
            su, ds_ = kv_static(kind, n)
            for m, d in enumerate(ds_): todo.append((su if m == 0 else [], d))
        dense = len(todo) > 9
        sl_ = slots()
        for su, d in todo:
            g = next(sl_)
            assert g < b + 51 or g > b + 52
            for i_ in su: S.put(g-1 if 'm0' in i_.w else g, i_, 'valu' if 'm0' in i_.w else 'free')
            S.put(g, d, 'mem')
        tags = [('W', c+1)] if c < 15 else [('K', 0)]
        tags += [('X', be) for be, cc in x_rd.items() if cc == c+1]
        S.put(b + 51, waitvm((lambda t: lambda ctx: t)(tags)), 'free')
        if OPT.get('qstamps'):
            for i_ in stamp(50): S.put(b + 51, i_, 'free')
        S.put(b + 51, barrier(), 'free')
        if OPT.get('qstamps'):
            for i_ in stamp(50): S.put(b + 51, i_, 'free')
    body = Block('qproj', S.flatten(0, 1024))
    cv = Block('qcvt')
    cv.add(stamp(2))
    for q in range(4): cv.add(dsr('ds_read_b128', v(vKf+4*q, 4), v(vKA+q), 0))
    tmp = [48, 56, 80, 88]
    for head in (1, 0):
        for f in range(16):
            t = tmp[f % 4]
            for r in range(8): cv.add(valu('v_accvgpr_read_b32', v(t+r), a(128*head + 8*f + r)))
            for r in range(0, 8, 2): cv.add(valu('v_pk_mul_f32', v(t+r, 2), v(t+r, 2), s(sC, 2)))
            for r in range(4):
                d = vQ + 4*f + r if head == 0 else t + r
                cv.add(valu('v_cvt_pk_bf16_f32', v(d), v(t+2*r), v(t+2*r+1)))
            if head == 1:
                for r in range(4): cv.add(valu('v_accvgpr_write_b32', a(aQ2 + 4*f + r), v(t+r)))
    if OPT['wo_warm'] == 1: cv.add(wo_touch())
    cv.add(salu('s_mov_b32', s(sKoff), 5*SLOT), salu('s_mov_b32', s(sVoff), 4*SLOT),
           salu('s_add_u32', s(sKm0), s(sW4k), KBASE), salu('s_add_u32', s(sVm0), s(sW4k), VBASE + SLOT),
           salu('s_mov_b32', s(sKrs), 0), salu('s_mov_b32', s(sVrs), SLOT))
    return pre, body, cv

def qk(j, q, first_c, kbuf=vKf):
    D = v(vS + 4*j, 4)
    return mfma(D, v(kbuf + 4*q, 4), v(vQ + (4*j+q)*4, 4), first_c if q == 0 else D)
def Preg(par, u, j): return vP + par*32 + (u*4+j)*4
def sm_ops(par, t, j):
    ex = [valu('v_exp_f32', v(vS+4*j+r), v(vS+4*j+r)) for r in range(4)]
    p = Preg(par, t//2, j) + (t % 2)*2
    cv = [valu('v_cvt_pk_bf16_f32', v(p+h), v(vS+4*j+2*h), v(vS+4*j+2*h+1)) for h in range(2)]
    return ex, cv
def kread(t, q, kbuf=vKf): return dsr('ds_read_b128', v(kbuf+4*q, 4), v(vKA+q), 4096*t)
def vread(dt, u, e):
    return dsr('ds_read_b64_tr_b16', v(vVf + (dt % 2)*8 + u*4 + e*2, 2), v(vVA+dt), 8192*u + 4096*e)
def ring_read_adv(srs, sd):
    return [salu('s_add_u32', s(srs), s(srs), SLOT), salu('s_cmp_eq_u32', s(srs), NSL*SLOT),
            salu('s_cselect_b32', s(sd), hex((SLOT - NSL*SLOT) & 0xffffffff), s(sSlot)), salu('s_cselect_b32', s(srs), 0, s(srs))]
def ring_dma_adv(sm0, soff, lim):
    return [salu('s_add_u32', s(soff), s(soff), SLOT), salu('s_add_u32', s(sm0), s(sm0), SLOT),
            salu('s_cmp_ge_u32', s(sm0), lim), salu('s_cselect_b32', s(sT0), NSL*SLOT, 0), salu('s_sub_u32', s(sm0), s(sm0), s(sT0))]
def kv_dyn(kind, m):
    if kind == 'K':
        return bdma(v(vKD+m), s(sK, 4), s(sKoff), 1024*m, tag=lambda i: ('K', i+4), flags=OPT['kv_flags'])
    return bdma(v(vVD+(m & 1)), s(sV, 4), s(sVoff), 1024*m, tag=lambda i: ('V', i+3), flags=OPT['kv_flags'])

def m0_max(m):
    L = []; c = m + 4
    for j in range(4): L.append(valu('v_max3_f32', v(m+j), v(vS+4*j), v(vS+4*j+1), v(vS+4*j+2)))
    for j in range(4): L.append(valu('v_max_f32', v(m+j), v(m+j), v(vS+4*j+3)))
    for op in ('v_permlane16_swap_b32', 'v_permlane32_swap_b32'):
        for j in range(4): L.append(valu('v_mov_b32', v(c+j), v(m+j)))
        for j in range(4): L.append(valu(op, v(m+j), v(c+j)))
        for j in range(4): L.append(valu('v_max_f32', v(m+j), v(m+j), v(c+j)))
    for j in range(4):
        for r in range(4): L.append(valu('v_sub_f32', v(vNeg+4*j+r), 0, v(m+j)))
    return L
def k1_m0():
    B = Block('m0')
    B.add(waitlg(R('v', vKf, 16)))
    for j in range(4):
        for q in range(4): B.add(qk(j, q, '0'))
    B.add(m0_max(vT))
    return B

def head_ops(S, par_prev):
    ex, cv = sm_ops(par_prev, 3, 3)
    S.put(0, ex[1], 'valu'); S.put(1, cv[0], 'valu'); S.put(2, ex[2], 'valu'); S.put(4, ex[3], 'valu'); S.put(5, cv[1], 'valu')

def k1_iter0():
    S = Sched()
    bufB = vP + 32
    for t in range(4):
        kb = vKf if t % 2 == 0 else bufB
        for j in range(4):
            for q in range(4): S.add_mfma(qk(j, q, v(vNeg+4*j, 4), kb))
        if t < 3:
            nb = bufB if t % 2 == 0 else vKf
            for q in range(4): S.put(16*t + 1 + 2*q, kread(t+1, q, nb), 'mem')
            S.put(16*t + 15, waitlg(R('v', nb, 16)), 'free')
    for t in range(4):
        for j in range(4):
            ex, cv = sm_ops(0, t, j)
            g0 = 16*t + 4*j + 7
            if (t, j) == (3, 3):
                S.put(63, ex[0], 'valu'); continue
            seq = [(g0, ex[0]), (g0+1, ex[1]), (g0+2, ex[2]), (g0+2, cv[0]), (g0+3, ex[3]), (g0+4, cv[1])]
            for g, i in seq: S.put(min(g, 63), i, 'valu')
    for n, i in enumerate(ring_read_adv(sKrs, sKd)): S.put(2+n, i, 'free')
    for n, i in enumerate(ring_read_adv(sVrs, sVd)): S.put(8+n, i, 'free')
    for dt in range(8): S.put(16 + 2*dt, valu('v_add_u32', v(vVA+dt), s(sVd), v(vVA+dt)), 'valu')
    for q in range(4): S.put(42 + q, valu('v_add_u32', v(vKA+q), s(sKd), v(vKA+q)), 'valu')
    S.put(49, waitvm(lambda i: [('K', i+1), ('V', i)]), 'free'); S.put(49, barrier(), 'free')
    for q in range(4): S.put(51 + 2*q, kread(0, q), 'mem')
    S.put(62, waitlg(R('v', vKf, 16)), 'free') if False else None
    for n, (u, e) in enumerate(((0, 0), (0, 1), (1, 0))): S.put(59 + 2*n if n < 2 else 62, vread(0, u, e), 'mem')
    S.put(63, waitlg(R('v', vKf, 16)), 'free')
    for n in range(OPT['st_it0']): S.put(4 + (56//OPT['st_it0'])*n, pk_store(n, 0), 'mem')
    return Block('iter0', S.flatten(0, 64))

def pv_group(S, p, par_prev, first):
    for dt in (2*p, 2*p+1):
        for j in range(4):
            D = a(aO + (dt*4+j)*4, 4)
            for u in range(2):
                S.add_mfma(mfma(D, v(vVf + (dt % 2)*8 + u*4, 4), v(Preg(par_prev, u, j), 4), '0' if (first and u == 0) else D))
    D = v(vL + 4*p, 4)
    for u in range(2):
        S.add_mfma(mfma(D, v(vOnes, 4), v(Preg(par_prev, u, p), 4), '0' if (first and u == 0) else D))

def k1_body(name, par, first=False, loop_end=None):
    S = Sched()
    for p in range(4):
        for j in range(4):
            for q in range(4): S.add_mfma(qk(j, q, v(vNeg+4*j, 4)))
        pv_group(S, p, 1-par, first)
    head_ops(S, 1-par)
    for t in range(4):
        b = 34*t
        for j in range(4):
            ex, cv = sm_ops(par, t, j)
            g0 = b + 8 + 8*j
            for g, i in [(g0, ex[0]), (g0+2, ex[1]), (g0+3, cv[0]), (g0+4, ex[2]), (g0+6, ex[3]), (g0+7, cv[1])]:
                if g < 136: S.put(g, i, 'valu')
        for q in range(4): S.put(b + 19 + 2*q, kread((t+1) % 4, q), 'mem')
        S.put(b + 32, waitlg(R('v', vKf, 16)), 'free')
        S.put(b + 1, vread(2*t, 1, 1), 'mem')
        for n, (u, e) in enumerate(((0, 0), (0, 1), (1, 0), (1, 1))): S.put(b + 3 + 2*n, vread(2*t+1, u, e), 'mem')
        S.put(b + 14, waitlg(R('v', vVf, 16)), 'free')
        for n, (u, e) in enumerate(((0, 0), (0, 1), (1, 0))): S.put(b + 29 + 2*n, vread((2*t+2) % 8, u, e), 'mem')
        for n in range(2): S.put(b + 21 + 4*n, valu('v_add_u32', v(vVA+2*t+n), s(sVd), v(vVA+2*t+n)), 'valu')
        kind = 'K' if t < 2 else 'V'
        for n in range(2): S.put(b + 11 + 16*n, kv_dyn(kind, 2*(t % 2) + n), 'mem')
    for n, g in enumerate((3, 7, 9, 13)): S.put(102 + g, valu('v_add_u32', v(vKA+n), s(sKd), v(vKA+n)), 'valu')
    S.put(10, salu('s_mov_b32', 'm0', s(sKm0)), 'free')
    S.put(68 + 10, salu('s_mov_b32', 'm0', s(sVm0)), 'free')
    for n, i in enumerate(ring_read_adv(sVrs, sVd)): S.put(2 + 2*n, i, 'free')
    for n, i in enumerate(ring_read_adv(sKrs, sKd)): S.put(36 + 2*n, i, 'free')
    for n, i in enumerate(ring_dma_adv(sKm0, sKoff, NSL*SLOT)): S.put(64 + 2*n - (0 if n < 1 else 0) + (24 if False else 0), i, 'free') if False else None
    for n, i in enumerate(ring_dma_adv(sKm0, sKoff, NSL*SLOT)): S.put(84 + 2*n, i, 'free')
    if OPT.get('lstamps'):
        for i_ in stamp(60): S.put(102 + 17, i_, 'free')
    S.put(102 + 17, waitvm(lambda i: [('K', i+1), ('V', i)] + ([('O', 0)] if i == 17 + 2*(7 - SIGPASS) else [])), 'free'); S.put(102 + 17, barrier(), 'free')
    if loop_end:
        S.put(102 + 18, salu('s_cmp_eq_u32', s(sCnt), s(sSig)), 'free')
        S.put(102 + 20, raw("s_cbranch_scc0 L_nosig1", 'branch', r=['scc']), 'free')
        for i_ in signal(C1, 'L_nosig1'): S.put(102 + 20, i_, 'free')
    if OPT.get('lstamps'):
        for i_ in stamp(60): S.put(102 + 17, i_, 'free')
    adv = ring_dma_adv(sVm0, sVoff, 2*NSL*SLOT)
    for n, i in enumerate(adv): S.put(102 + 28 + n, i, 'free')
    if first:
        pos = [34*p + g for p in range(4) for g in (6, 13, 15, 17)]
        left = 16 - OPT['st_it0']
        for n in range(left): S.put(pos[(n*16)//left], pk_store(OPT['st_it0'] + n, 0), 'mem')
    ins = S.flatten(0, 136)
    B = Block(name, ins)
    if loop_end:
        B.add(salu('s_sub_u32', s(sCnt), s(sCnt), 1), raw(f"s_cbranch_scc0 {loop_end}", 'branch', r=['scc']))
    B.sched = S
    return B

def pk_store(n, item):
    j, sp = divmod(n, 4)
    return bstore('buffer_store_dwordx4', a(aPk + 4*n, 4), v(vOst), s(sO, 4), s(sJO+j), 1024*sp, tag=('O', item), flags=OPT['o_flags'])

def conv_ops(j, sp, n, packed):
    t = vP + (n % 4)*8; rl = vT + 2*j
    g = []
    for h in range(2):
        for r in range(4): g.append(valu('v_accvgpr_read_b32', v(t+4*h+r), a(aO + ((2*sp+h)*4+j)*4 + r)))
    if packed:
        for r in range(0, 8, 2): g.append(valu('v_pk_mul_f32', v(t+r, 2), v(t+r, 2), v(rl, 2), extra='op_sel_hi:[1,0]'))
    else:
        for r in range(8): g.append(valu('v_mul_f32', v(t+r), v(t+r), v(rl)))
    for r in range(4): g.append(valu('v_cvt_pk_bf16_f32', v(t+r), v(t+2*r), v(t+2*r+1)))
    for r in range(4): g.append(valu('v_accvgpr_write_b32', a(aPk + (j*4+sp)*4 + r), v(t+r)))
    return g
def qmove(): return [valu('v_accvgpr_read_b32', v(vQ+r), a(aQ2+r)) for r in range(64)]
def rcps(): return [valu('v_rcp_f32', v(vT+2*j), v(vL+4*j)) for j in range(4)]
def fin_dma():
    L = [('free', salu('s_mov_b32', 'm0', s(sKm0)))] + [('mem', kv_dyn('K', m)) for m in range(4)]
    L += [('free', salu('s_mov_b32', 'm0', s(sVm0)))] + [('mem', kv_dyn('V', m)) for m in range(4)]
    L += [('mem', poll(C1, vPoll, 'P1'))]
    L += [('free', i) for i in ring_dma_adv(sKm0, sKoff, NSL*SLOT) + ring_dma_adv(sVm0, sVoff, 2*NSL*SLOT)]
    return L

def k1_fin():
    S = Sched()
    for j in range(4):
        D = v(vL + 4*j, 4)
        for u in range(2): S.add_mfma(mfma(D, v(vOnes, 4), v(Preg(1, u, j), 4), D))
    for dt in range(8):
        for j in range(4):
            D = a(aO + (dt*4+j)*4, 4)
            for u in range(2): S.add_mfma(mfma(D, v(vVf + (dt % 2)*8 + u*4, 4), v(Preg(1, u, j), 4), D))
    head_ops(S, 1)
    S.put(0, vread(0, 1, 1), 'mem')
    for n, (u, e) in enumerate(((0, 0), (0, 1), (1, 0), (1, 1))): S.put(1 + n, vread(1, u, e), 'mem')
    for dt in range(8):
        b = 8 + 8*dt
        S.put(b - 1, waitlg(R('v', vVf + (dt % 2)*8, 8)), 'free')
        if dt + 2 < 8:
            for n, (u, e) in enumerate(((0, 0), (0, 1), (1, 0), (1, 1))): S.put(b + 8 + n, vread(dt+2, u, e), 'mem')
    S.put(9, valu('v_add_f32', v(vT+1), v(vL), v(vL+4)), 'valu')
    S.put(12, valu('v_add_f32', v(vT+3), v(vL+8), v(vL+12)), 'valu')
    S.put(12, valu('v_add_f32', v(vT+1), v(vT+1), v(vT+3)), 'valu')
    S.put(13, valu('v_cmp_nge_f32', 'vcc', s(sThr), v(vT+1)), 'valu')
    for n, i in enumerate(rcps()): S.put(10 + n if n < 3 else 13, i, 'valu')
    S.put(14, salu('s_cmp_lg_u64', 'vcc', 0), 'valu')
    S.put(14, raw("s_cbranch_scc1 L_slow", 'branch', r=['scc']), 'valu')
    cut = 15
    g = 21
    for cls, i in fin_dma():
        if cls == 'mem':
            while g % 8 < 4: g += 1
            S.put(g, i, cls); g += 1
        else:
            if 'm0' in i.w: S.put(g - 1, i, 'valu')
            else: S.put(g, i, cls); g += 1
    q = [(15, i) for i in qmove()]
    n = 0
    for sp in range(3):
        for j in range(4):
            q += [(8 + 16*sp + 8 + 2*j + 1 + 3, i) for i in conv_ops(j, sp, n, False)]; n += 1
    g = 15; per = 6
    while q and g < 72:
        k = 0
        while q and k < per and q[0][0] <= g:
            S.put(g, q.pop(0)[1], 'valu'); k += 1
        g += 1
    A = Block('fin_a', S.flatten(0, cut)); B = Block('fin_b', S.flatten(cut, 72))
    B.add([i for _, i in q])
    return A, B

def k1_fin_c1():
    B = Block('fin_c1')
    B.add(salu('s_mov_b32', s(sItem), 1), salu('s_mov_b32', s(sO+2), s(sOoff)),
          salu('s_cmp_eq_u32', s(sWv), 0), salu('s_cselect_b32', s(sSig), SIGPASS, 99))
    ops = []
    for j in range(4): ops += conv_ops(j, 3, j, False)
    B.add(waitlg(R('v', vKf, 16)))
    for j in range(4):
        for q in range(4):
            B.add(qk(j, q, '0')); B.add(ops[:5]); ops = ops[5:]
    B.add(ops)
    B.add(m0_max(vP + 32))
    B.add(raw("s_branch L_iter0", 'branch'))
    return B

def k1_slow():
    kf, Sx, Pp = vP, vP+32, vS
    m, l, al, t = vNeg, vNeg+4, vNeg+8, vNeg+12
    ak, av = vT+8, vT+9
    pk = vVf
    pre = Block('slow_pre')
    pre.add(waitlg0(), [i for _, i in fin_dma()])
    pre.add(valu('v_and_b32', 'v1', 63, 'v0'), valu('v_and_b32', 'v3', 15, 'v0'), valu('v_lshrrev_b32', 'v4', 4, 'v1'),
            valu('v_lshlrev_b32', v(ak), 8, 'v3'), valu('v_lshl_add_u32', v(ak), 'v4', 4, v(ak)),
            valu('v_lshlrev_b32', v(av), 10, 'v4'), valu('v_lshl_add_u32', v(av), 'v3', 1, v(av)))
    for j in range(4): pre.add(valu('v_mov_b32', v(m+j), '0xff800000'), valu('v_mov_b32', v(l+j), 0))
    for r in range(128): pre.add(valu('v_accvgpr_write_b32', a(aO+r), 0))
    pre.add(salu('s_lshl_b32', s(sT0), s(sItem), 18), salu('s_add_u32', s(sT1), s(sT0), 4096), salu('s_mov_b32', s(sCnt), 31))
    L = Block('slow_loop')
    for tt in range(2):
        for q in range(4):
            L.add(bload('buffer_load_dwordx4', v(kf+(tt*4+q)*4, 4), v(ak), s(sK, 4), s(sT0+tt), 64*q))
    L.add(waitvm0())
    for tt in range(2):
        for j in range(4):
            D = v(Sx + (j*2+tt)*4, 4)
            for q in range(4): L.add(mfma(D, v(kf+(tt*4+q)*4, 4), v(vQ+(4*j+q)*4, 4), '0' if q == 0 else D))
    for j in range(4):
        x = Sx + 8*j
        L.add(valu('v_max3_f32', v(t), v(x), v(x+1), v(x+2)), valu('v_max3_f32', v(t), v(t), v(x+3), v(x+4)),
              valu('v_max3_f32', v(t), v(t), v(x+5), v(x+6)), valu('v_max3_f32', v(t), v(t), v(x+7), v(m+j)))
        for op in ('v_permlane16_swap_b32', 'v_permlane32_swap_b32'):
            L.add(valu('v_mov_b32', v(t+1), v(t)), valu(op, v(t), v(t+1)), valu('v_max_f32', v(t), v(t), v(t+1)))
        L.add(valu('v_sub_f32', v(al+j), v(m+j), v(t)), valu('v_exp_f32', v(al+j), v(al+j)), valu('v_mov_b32', v(m+j), v(t)))
        L.add(valu('v_mul_f32', v(l+j), v(l+j), v(al+j)))
        for r in range(8):
            L.add(valu('v_sub_f32', v(x+r), v(x+r), v(t)), valu('v_exp_f32', v(x+r), v(x+r)))
        for r in range(8): L.add(valu('v_add_f32', v(l+j), v(l+j), v(x+r)))
        for r in range(4): L.add(valu('v_cvt_pk_bf16_f32', v(Pp+4*j+r), v(x+2*r), v(x+2*r+1)))
    for half in range(2):
        for d4 in range(4):
            dt = half*4 + d4
            for jj in range(8):
                L.add(bload('buffer_load_ushort', v(kf+d4*8+jj), v(av), s(sV, 4), s(sT0+(jj//4)), (jj % 4)*256 + 32*dt))
        if half == 0:
            for dt in range(8):
                for j in range(4):
                    for r in range(4):
                        x = aO + (dt*4+j)*4 + r
                        L.add(valu('v_accvgpr_read_b32', v(t+r), a(x)))
                    for r in range(4): L.add(valu('v_mul_f32', v(t+r), v(t+r), v(al+j)))
                    for r in range(4):
                        x = aO + (dt*4+j)*4 + r
                        L.add(valu('v_accvgpr_write_b32', a(x), v(t+r)))
        L.add(waitvm0())
        for d4 in range(4):
            dt = half*4 + d4
            for r in range(4): L.add(valu('v_lshl_or_b32', v(pk+4*d4+r), v(kf+d4*8+2*r+1), 16, v(kf+d4*8+2*r)))
        for d4 in range(4):
            dt = half*4 + d4
            for j in range(4):
                D = a(aO + (dt*4+j)*4, 4)
                L.add(mfma(D, v(pk+4*d4, 4), v(Pp+4*j, 4), D))
    L.add(salu('s_add_u32', s(sT0), s(sT0), 8192), salu('s_add_u32', s(sT1), s(sT1), 8192),
          salu('s_sub_u32', s(sCnt), s(sCnt), 1), raw("s_cbranch_scc0 L_slow_loop", 'branch', r=['scc']))
    post = Block('slow_post')
    for j in range(4):
        for op in ('v_permlane16_swap_b32', 'v_permlane32_swap_b32'):
            post.add(valu('v_mov_b32', v(t), v(l+j)), valu(op, v(l+j), v(t)), valu('v_add_f32', v(l+j), v(l+j), v(t)))
        post.add(valu('v_mov_b32', v(vL+4*j), v(l+j)))
    post.add(rcps(), qmove())
    n = 0
    for sp in range(3):
        for j in range(4): post.add(conv_ops(j, sp, n, True)); n += 1
    post.add(raw("s_branch L_sel", 'branch'))
    return pre, L, post

def wo_touch():
    sWo = 80
    return [valu('v_and_b32', 'v1', 63, 'v0'), valu('v_lshlrev_b32', 'v1', 7, 'v1'),
            salu('s_lshl_b32', s(sT2), s(sWv), 13),
            bload('buffer_load_dword', 'v2', 'v1', s(sWo, 4), s(sT2), 0, tag='WO')]

def check_flag(spin, back):
    return [valu('v_readfirstlane_b32', 's56', v(vPoll)), salu('s_cmp_ge_u32', 's56', 16),
            raw(f"s_cbranch_scc0 {spin}", 'branch', r=['scc']), label(back)]

def phase3():
    vAA, vDW, vBO, vOut, vRW, vRR = 8, 16, 17, 18, 19, 21
    BB = (32, 160, 96)
    aA, aC = 128, 0
    PS = ((0, 1), (2, 4), (5, 6))
    NST = 16
    def hh(st): return 2*((st//2) % 4) + st//8
    def bl(st, jq, u):
        d = BB[st % 3] + (jq*2+u)*4
        return bload('buffer_load_dwordx4', v(d, 4), v(vBO), s(sB, 4), s(sQ+jq), (2*(st % 2)+u)*1024, tag=('B', st), flags=OPT['b_flags'])
    def q_setup(st): return [salu('s_mov_b32', s(sQ+jq), jq*131072 + hh(st)*4096) for jq in range(8)]
    def ad(st, m):
        u, mm = divmod(m, 4)
        return [salu('s_add_u32', 'm0', s(sW4k), PS[st % 3][u]*SLOT + 1024*mm),
                salu('s_mov_b32', s(sT0 + (m & 1)), (hh(st)*128 + (st % 2)*64 + m*8)*1024)], \
               bdma(v(vDW), s(sA, 4), s(sT0 + (m & 1)), 0, tag=('A', st), flags=OPT['a_flags'])
    def ar(st, nt, n):
        u, e = divmod(n, 2)
        sl = PS[st % 3][u]
        d = aA + (st % 2)*32 + (nt*2+u)*4 + e*2
        return dsr('ds_read_b64_tr_b16', a(d, 2), v(vAA + (sl//4)*4 + nt), (sl % 4)*SLOT + e*2048)
    E = Block('epi2')
    E.add(waitvm(lambda c: ['P1']), check_flag('L_spin1', 'L_back1'))
    E.add(valu('v_and_b32', 'v1', 63, 'v0'), valu('v_lshrrev_b32', 'v2', 6, 'v0'), valu('v_and_b32', 'v3', 15, 'v0'),
          valu('v_lshrrev_b32', 'v4', 4, 'v1'))
    E.add(valu('v_lshrrev_b32', 'v22', 3, 'v1'), valu('v_bfe_u32', 'v23', 'v1', 4, 2), valu('v_lshlrev_b32', 'v23', 1, 'v23'),
          valu('v_and_b32', 'v24', 7, 'v1'), valu('v_xor_b32', 'v23', 'v23', 'v24'),
          valu('v_lshl_add_u32', 'v22', 'v2', 10, 'v22'), valu('v_lshlrev_b32', 'v22', 10, 'v22'),
          valu('v_lshl_add_u32', v(vDW), 'v23', 4, 'v22'))
    E.add(valu('v_lshlrev_b32', 'v22', 15, 'v2'), valu('v_lshl_add_u32', v(vBO), 'v1', 4, 'v22'))
    for m in range(8):
        su, d = ad(0, m); E.add(su, d)
    E.add(q_setup(0))
    for jq in range(8):
        for u in range(2): E.add(bl(0, jq, u))
    late = []
    for m in range(8):
        su, d = ad(1, m); late.append(su + [d])
    for jq in range(8):
        for u in range(2): late.append([bl(1, jq, u)])
    ops = []
    for j in range(4): ops += conv_ops(j, 3, j, True)
    for n, i in enumerate(ops):
        E.add(i)
        if n % 3 == 2 and late: E.add(late.pop(0))
    for g in late: E.add(g)
    E.add(salu('s_add_u32', s(sO), s(sO), 4096), salu('s_addc_u32', s(sO+1), s(sO+1), 0), salu('s_sub_u32', s(sO+2), s(sOoff), 4096))
    E.add(valu('v_bfe_u32', 'v5', 'v1', 2, 2), valu('v_lshl_add_u32', 'v22', 'v4', 2, 'v5'),
          valu('v_bfe_u32', 'v23', 'v22', 1, 2), valu('v_lshlrev_b32', 'v23', 5, 'v23'),
          valu('v_lshl_add_u32', 'v23', 'v22', 7, 'v23'), valu('v_and_b32', 'v24', 3, 'v1'), valu('v_lshl_add_u32', 'v23', 'v24', 3, 'v23'),
          valu('v_lshl_add_u32', 'v23', 'v2', 12, 'v23'))
    for nt in range(4): E.add(valu('v_xor_b32', v(vAA+nt), 32*nt, 'v23'))
    for nt in range(4): E.add(valu('v_add_u32', v(vAA+4+nt), 4*SLOT, v(vAA+nt)))
    E.add(waitvm(lambda c: [('A', 0)]))
    for nt in range(4):
        for n in range(4): E.add(ar(0, nt, n))
        if nt == 2: E.add(waitlg(R('a', aA, 8)))
    E.add(valu('v_lshl_add_u32', 'v22', 'v2', 5, 'v3'), valu('v_lshlrev_b32', 'v22', 11, 'v22'),
          valu('v_lshl_add_u32', v(vOut), 'v4', 3, 'v22'),
          valu('v_lshlrev_b32', 'v22', 4, 'v1'), valu('v_lshl_add_u32', v(vRW), 'v2', 12, 'v22'), valu('v_add_u32', v(vRW+1), 4*SLOT, v(vRW)),
          valu('v_lshl_add_u32', v(vRR), 'v2', 15, 'v22'))
    E.add(waitvm(lambda c: [('B', 0)]), waitlg(R('a', aA, 32)))
    S = Sched()
    for st in range(NST):
        b = 64*st
        order = [(nt, jq) for nt in range(4) for jq in range(8)] if st < NST-1 else [(nt, jq) for jq in range(8) for nt in range(4)]
        for nt, jq in order:
            D = a(aC + (nt*8+jq)*4, 4)
            for u in range(2):
                g = S.add_mfma(mfma(D, a(aA + (st % 2)*32 + (nt*2+u)*4, 4), v(BB[st % 3] + (jq*2+u)*4, 4),
                                    '0' if (st == 0 and u == 0) else D))
            if st == NST-1:
                S.put(min(g + 7, 64*NST - 1), dsw('ds_write_b128', v(vRW + jq//4), D, (jq % 4)*SLOT + nt*1024), 'mem')
                if (jq*4+nt) % 8 == 7 and g + 9 < 64*NST: S.put(g + 9, raw("s_waitcnt lgkmcnt(4)", 'wait'), 'free'); S.f[g+9]['free'][-1].meta = {'lg': 4}
        if st < 2:
            for n in range(8): S.put(b + (53 + 2*n if n < 5 else 17 + 2*(n-5) - (0)), pk_store(8*st + n, 1), 'mem') if n < 5 else S.put(b + 16 + (n-5)*1 + (n-5), pk_store(8*st + n, 1), 'mem')
        if st == 5: S.put(b + 17, poll(C2, vPoll, 'P2'), 'mem')
        if st == 6:
            S.put(b + 16, waitvm(lambda c: ['P2']), 'free')
            ck = check_flag('L_spin2', 'L_back2')
            S.put(b + 16, ck[0], 'valu'); S.put(b + 18, ck[1], 'valu'); S.put(b + 19, ck[2], 'valu'); S.put(b + 19, ck[3], 'valu')
        if st + 2 < NST:
            g = b
            for m in range(8):
                su, d = ad(st+2, m)
                S.put(g, su[0], 'free'); S.put(g+1, su[1], 'free'); S.put(g+1, d, 'mem'); g += 2
            if (st+2) % 2 == 0:
                for n, i in enumerate(q_setup(st+2)): S.put(b + 16 + n//2, i, 'free')
            for n, (jq, u) in enumerate((jq, u) for jq in range(8) for u in range(2)):
                S.put(b + 21 + 2*n, bl(st+2, jq, u), 'mem')
        if st + 1 < NST:
            S.put(b + 30, waitvm((lambda x: lambda c: [('A', x)])(st+1)), 'free')
            for n in range(16): S.put(b + 30 + 2*n, ar(st+1, n//4, n % 4), 'mem')
            S.put(b + 54, waitlg(R('a', aA + ((st+1) % 2)*32, 8)), 'free')
            S.put(b + 63, waitvm((lambda x: lambda c: [('B', x)] + ([('O', 1)] if x == 3 else []))(st+1)), 'free')
            S.put(b + 63, waitlg(R('a', aA + ((st+1) % 2)*32, 32)), 'free')
            if st == 2:
                S.put(b + 63, barrier(), 'free')
                S.put(b + 63, salu('s_cmp_eq_u32', s(sWv), 0), 'free')
                S.put(b + 63, raw("s_cbranch_scc0 L_nosig2", 'branch', r=['scc']), 'free')
                for i_ in signal(C2, 'L_nosig2'): S.put(b + 63, i_, 'free')
            if OPT.get('qstamps'):
                for i_ in stamp(50): S.put(b + 63, i_, 'free')
    body = Block('p3body', S.flatten(0, 64*NST))
    ep = Block('p3epi')
    ep.add(waitlg0(), barrier())
    vB = 32
    def rd(i):
        src, n = divmod(i, 8); qq, nt = divmod(n, 4)
        return dsr('ds_read_b128', v(vB + 4*i, 4), v(vRR), qq*SLOT + src*4096 + nt*1024)
    for i in range(14): ep.add(rd(i))
    for i in range(14, 32 + 6):
        if i < 32: ep.add(waitlg(R('v', vB + 4*(i-14), 4)), rd(i))
        k = i - 6
        if 8 <= k < 24:
            ep.add(waitlg(R('v', vB + 4*k, 4)))
            for r in range(4): ep.add(valu('v_add_f32', v(vB+4*(k % 8)+r), v(vB+4*(k % 8)+r), v(vB+4*k+r)))
    ep.add(salu('s_mov_b32', s(sT0), 0), salu('s_mov_b32', s(sT1), 16*2048), waitlg0())
    for n in range(8):
        qq, nt = divmod(n, 4)
        d = vB + 128 + 2*n
        for r in range(4): ep.add(valu('v_add_f32', v(vB+4*n+r), v(vB+4*n+r), v(vB+96+4*n+r)))
        ep.add(valu('v_cvt_pk_bf16_f32', v(d), v(vB+4*n), v(vB+4*n+1)), valu('v_cvt_pk_bf16_f32', v(d+1), v(vB+4*n+2), v(vB+4*n+3)))
        ep.add(bstore('buffer_store_dwordx2', v(d, 2), v(vOut), s(sOut, 4), s(sT0+qq), 32*nt))
    return E, body, ep

def gen_k1():
    pro = k1_prologue(); qpre, qproj, qcvt = k1_qproj()
    m0 = k1_m0(); it0 = k1_iter0()
    b1 = k1_body('b1f', 1, first=True); be = k1_body('beven', 0); bo = k1_body('bodd', 1, loop_end='L_loop')
    setc = Block('setc', [salu('s_mov_b32', s(sCnt), 6)])
    fa, fb = k1_fin(); fc1 = k1_fin_c1()
    sel = Block('sel', [salu('s_cmp_lg_u32', s(sItem), 0), raw("s_cbranch_scc1 L_epi2", 'branch', r=['scc'])])
    spre, sloop, spost = k1_slow()
    e2, p3, p3e = phase3()
    def item(base, slow):
        t = [(m0, base)] if base == 0 else []
        t += [(it0, base), (b1, base+1), (setc, 0)]
        for i in range(2, 16, 2): t += [(be, base+i), (bo, base+i+1)]
        t += [(fa, base+16)]
        t += [(spre, base+16), (sloop, 0), (sloop, 0), (spost, 0)] if slow else [(fb, base+16)]
        t += [(sel, 0)]
        t += [(fc1, 0)] if base == 0 else [(e2, 0), (p3, 0), (p3e, 0)]
        return t
    head = [(pro, 0), (qpre, 0), (qproj, 0), (qcvt, 0)]
    tr_fast = head + item(0, False) + item(16, False)
    tr_slow = head + item(0, True) + item(16, True)
    resolve_waits(tr_fast); resolve_waits(tr_slow)
    fix = ('pro', 'qpre', 'qcvt', 'm0', 'fin_a', 'fin_b', 'fin_c1', 'slow_pre', 'slow_loop', 'slow_post', 'iter0', 'epi2', 'p3epi', 'p3body')
    for tr in (tr_fast, tr_slow):
        e = hazards(tr, fix)
        if e: print("\n".join(e[:20])); raise SystemExit("hazards in k1")
    for tr in (tr_fast, tr_slow):
        e = check_waits(tr, verbose=True)
        if e: print("\n".join(e[:20])); raise SystemExit("wait errors in k1")
    over = [(g, be.sched.load(g)) for g in range(136) if be.sched.load(g)[1] > 2 or be.sched.load(g)[0] > 1]
    print("k1 body over-full gaps:", over, " nops in p3body:", sum(1 for i in p3.ins if i.k == 'nop'))
    out = []
    out += [pro.text(), qpre.text(), qproj.text(), qcvt.text()]
    out += [stamp_text(3), m0.text(), "L_iter0:", stamp_text(4), it0.text(), stamp_text(5), b1.text(), setc.text(), stamp_text(6), ".p2align 6", "L_loop:", be.text(), bo.text(), stamp_text(7),
            fa.text(), fb.text(), "L_sel:", stamp_text(8), sel.text(), fc1.text()]
    out += ["L_slow:", spre.text(), "L_slow_loop:", sloop.text(), spost.text()]
    out += [spin_text('L_spin1', C1, 'L_back1'), spin_text('L_spin2', C2, 'L_back2')]
    out += ["L_epi2:", e2.text(), stamp_text(10), p3.text(), stamp_text(11), p3e.text(), stamp_text(12)]
    if OPT['stamps'] and OPT.get('dbgout'):
        out += ["""    v_and_b32 v1, 63, v0
    v_lshlrev_b32 v2, 2, v1
    v_cmp_gt_u32 vcc, 15, v1
    s_and_saveexec_b64 s[92:93], vcc
    s_cbranch_execz L_dbg_done
    global_atomic_umax v2, v255, s[58:59] sc1
    s_mov_b64 exec, 1
    v_not_b32 v3, v255
    global_atomic_umax v2, v3, s[58:59] offset:60 sc1
L_dbg_done:"""]
    elif OPT['stamps']:
        out += [stamp_out(0)]
    out += ["L_k1_end:", "    s_endpgm"]
    return "\n".join(out)

HEADER = open(os.path.join(os.path.dirname(os.path.abspath(__file__)), "header.txt")).read()

def desc(name):
    return f""".p2align 6
.amdhsa_kernel {name}
  .amdhsa_next_free_vgpr 512
  .amdhsa_next_free_sgpr 102
  .amdhsa_accum_offset 256
  .amdhsa_group_segment_fixed_size 0
  .amdhsa_kernarg_size 104
  .amdhsa_user_sgpr_count 2
  .amdhsa_user_sgpr_kernarg_segment_ptr 1
  .amdhsa_system_sgpr_workgroup_id_x 1
.end_amdhsa_kernel
"""

def main(path):
    k1 = gen_k1()
    n1 = NAME + "_kernel"
    txt = HEADER
    txt += f"; @launch grid=(256,1,1) block=(256,1,1) lds=163840\n"
    txt += f""".amdgcn_target "amdgcn-amd-amdhsa--gfx950"
.text
.globl {n1}
.p2align 8
.type {n1},@function
{n1}:
{k1}
.section .rodata,"a"
{desc(n1)}"""
    open(path, "w").write(txt)

if __name__ == "__main__":
    for kv in sys.argv[2:]:
        k_, v_ = kv.split('=')
        OPT[k_] = int(v_) if v_.lstrip('-').isdigit() else v_
    main(sys.argv[1] if len(sys.argv) > 1 else f"cdna_kernels/{NAME}.s")
```

```python
import sys, os
sys.path.insert(0, os.path.dirname(os.path.abspath(__file__)))
from asmlib import *

NAME = "concat_heads__mha_block_cached__gqa_block_cached__near_ridge"
OPT = dict(kv_flags='nt', w_flags='', x_flags='', o_flags='sc1', a_flags='', b_flags='sc1', t_flags='', t_dist=0, wo_warm=1, stamps=False)

vKA, vVA, vKD, vVD, vOst = 8, 12, 20, 24, 26
vWA, vWD, vXA = 27, 29, 30
vNeg, vS, vKf, vVf, vP, vQ, vOnes, vL = 32, 48, 64, 80, 96, 160, 224, 228
vT = 244
vWf, vX = 64, 96
vXD, vXR = 32, 36
XS = (1, 2, 8, 9)
aO, aQ2 = 0, 128
sK, sV, sW, sX, sO = 8, 12, 16, 20, 24
sWv, sW4k = 28, 29
sKoff, sVoff, sKm0, sVm0 = 30, 31, 32, 33
sKrs, sVrs, sKd, sVd = 34, 35, 64, 65
sT0, sT1, sT2 = 66, 67, 68
sCnt, sItem, sOoff = 69, 70, 71
sC = 62
sThr = 72
sJ = 74
sMask = 78
sSlot = 73
sA, sB, sOut, sQ = 36, 40, 44, 48
sGp, sGc, sSig = 75, 76, 77
vGp, vGc, vOne, vPoll = 30, 31, 7, 6
SLOT = 16384
NSL = 5
KBASE, VBASE, WBASE = 0, NSL*SLOT, 3*SLOT
SCALE = 0x3E0293EE
import struct, math
SCALE = struct.unpack('<I', struct.pack('<f', math.log2(math.e)/math.sqrt(128.0)))[0]

def v(b, n=1): return F('v', b, n)
def a(b, n=1): return F('a', b, n)
def s(b, n=1): return F('s', b, n)

def stamp(n):
    if not OPT['stamps']: return []
    if OPT.get('lstamps') and n not in (0, 60): return []
    if OPT.get('dbgout') and n in (4, 5, 9): return []
    pre = [raw("s_mov_b32 s99, 0", 'misc'), raw("v_mov_b32 v254, 0", 'misc'), raw("v_mov_b32 v255, 0", 'misc')] if n == 0 else []
    return pre + [raw("s_memtime s[94:95]", 'misc'), raw("s_memrealtime s[96:97]", 'misc'),
            raw("s_mov_b32 s98, m0", 'misc'), raw("s_waitcnt lgkmcnt(0)", 'misc'),
            raw("s_mov_b32 m0, s99", 'misc'), raw("s_nop 3", 'misc'), raw("v_writelane_b32 v254, s94, m0", 'misc'),
            raw("v_writelane_b32 v255, s96, m0", 'misc'), raw("s_add_u32 s99, s99, 1", 'misc'), raw("s_mov_b32 m0, s98", 'misc'), raw("s_nop 1", 'misc')]
def stamp_text(n): return "\n".join("    " + i.t for i in stamp(n))
def stamp_out(region):
    return f"""    s_add_u32 s92, s60, {hex(64*1048576 + region*1048576)}
    s_addc_u32 s93, s61, 0
    s_mov_b32 s8, s92
    s_mov_b32 s9, s93
    s_mov_b32 s10, 1048576
    s_mov_b32 s11, 0x00020000
    s_lshl_b32 s92, s2, 2
    s_add_u32 s92, s92, s28
    s_lshl_b32 s92, s92, 9
    v_and_b32 v1, 63, v0
    v_lshlrev_b32 v1, 3, v1
    buffer_store_dwordx2 v[254:255], v1, s[8:11], s92 offen
"""

def k1_prologue():
    B = Block('pro')
    B.add(raw("s_cmp_ge_u32 s2, 256", 'salu'), raw("s_cbranch_scc1 L_k1_end", 'branch'))
    B.add(stamp(0))
    B.add(raw("s_load_dwordx16 s[36:51], s[0:1], 0"), raw("s_load_dwordx8 s[52:59], s[0:1], 64"),
          raw("s_load_dwordx2 s[60:61], s[0:1], 96"))
    B.add(valu('v_and_b32', 'v1', 63, 'v0'),
          valu('v_lshrrev_b32', 'v2', 6, 'v0'),
          valu('v_and_b32', 'v3', 15, 'v0'),
          valu('v_readfirstlane_b32', s(sWv), 'v2'),
          valu('v_lshrrev_b32', 'v4', 4, 'v1'),
          valu('v_bfe_u32', 'v5', 'v1', 2, 2),
          valu('v_and_b32', 'v6', 3, 'v1'))
    B.add(salu('s_and_b32', 's3', 's2', 7), salu('s_lshr_b32', 's4', 's2', 3),
          salu('s_lshr_b32', 's5', 's3', 2),
          salu('s_bfe_u32', 's6', 's3', 0x10001),
          salu('s_lshl_b32', 's6', 's6', 2), salu('s_and_b32', 's7', 's4', 3), salu('s_add_u32', 's6', 's6', 's7'),
          salu('s_and_b32', 's7', 's3', 1), salu('s_lshl_b32', 's7', 's7', 3), salu('s_lshr_b32', 's4', 's4', 2),
          salu('s_add_u32', 's7', 's7', 's4'),
          salu('s_lshl_b32', s(sW4k), s(sWv), 12))
    B.add(valu('v_xor_b32', 'v7', 'v4', 'v3'), valu('v_lshlrev_b32', 'v7', 4, 'v7'),
          valu('v_lshl_add_u32', v(vKA), 'v3', 8, 'v7'))
    for q in range(1, 4): B.add(valu('v_xor_b32', v(vKA+q), 64*q, v(vKA)))
    B.add(valu('v_lshl_add_u32', 'v7', 'v4', 2, 'v5'),
          valu('v_and_b32', v(vT), 7, 'v7'), valu('v_lshlrev_b32', v(vT), 5, v(vT)),
          valu('v_lshl_add_u32', v(vT), 'v7', 8, v(vT)),
          valu('v_lshl_add_u32', v(vT), 'v6', 3, v(vT)))
    for dt in range(8):
        B.add(valu('v_xor_b32', v(vVA+dt), 32*dt, v(vT)))
    for dt in range(8):
        B.add(valu('v_add_u32', v(vVA+dt), VBASE + SLOT, v(vVA+dt)))
    B.add(valu('v_lshlrev_b32', 'v7', 12, 'v2'), valu('v_lshl_add_u32', 'v7', 'v4', 8, 'v7'))
    for m in range(4):
        B.add(valu('v_add_u32', v(vT), 4*m, 'v4'), valu('v_xor_b32', v(vT), v(vT), 'v3'),
              valu('v_lshl_add_u32', v(vKD+m), v(vT), 4, 'v7'))
    for m in range(2):
        B.add(valu('v_add_u32', v(vT), 4*m, 'v4'), valu('v_lshlrev_b32', v(vT), 1, v(vT)),
              valu('v_xor_b32', v(vT), v(vT), 'v3'), valu('v_lshl_add_u32', v(vVD+m), v(vT), 4, 'v7'))
    B.add(valu('v_lshlrev_b32', 'v7', 19, 'v2'), valu('v_lshl_add_u32', v(vOst), 'v1', 4, 'v7'))
    B.add(valu('v_lshl_add_u32', 'v7', 'v4', 3, 'v5'), valu('v_lshlrev_b32', 'v7', 7, 'v7'),
          valu('v_lshrrev_b32', v(vT), 1, 'v5'), valu('v_lshlrev_b32', v(vT), 2, v(vT)),
          valu('v_xor_b32', v(vT), v(vT), 'v6'),
          valu('v_lshl_add_u32', 'v7', v(vT), 4, 'v7'),
          valu('v_add_u32', v(vWA), WBASE, 'v7'), valu('v_xor_b32', 'v7', 64, 'v7'),
          valu('v_add_u32', v(vWA+1), WBASE, 'v7'))
    B.add(valu('v_lshrrev_b32', 'v7', 3, 'v1'),
          valu('v_bfe_u32', v(vT), 'v1', 4, 1), valu('v_lshlrev_b32', v(vT), 2, v(vT)),
          valu('v_and_b32', v(vT+1), 7, 'v1'), valu('v_xor_b32', v(vT), v(vT), v(vT+1)),
          valu('v_lshl_add_u32', 'v7', 'v2', 5, 'v7'), valu('v_lshlrev_b32', 'v7', 13, 'v7'),
          valu('v_lshl_add_u32', v(vWD), v(vT), 4, 'v7'))
    B.add(valu('v_lshlrev_b32', 'v7', 6, 'v2'), valu('v_add_u32', 'v7', 'v7', 'v4'), valu('v_lshlrev_b32', 'v7', 10, 'v7'))
    for m in range(4):
        B.add(valu('v_add_u32', v(vT), 4*m, 'v4'), valu('v_xor_b32', v(vT), v(vT), 'v3'),
              valu('v_lshl_add_u32', v(vXD+m), v(vT), 4, 'v7'))
        if m: B.add(valu('v_add_u32', v(vXD+m), 4096*m, v(vXD+m)))
    B.add(valu('v_lshlrev_b32', 'v7', 12, 'v2'))
    for q in range(4):
        B.add(valu('v_add_u32', v(vXR+q), v(vKA+q), 'v7'))
    for q in range(4):
        B.add(valu('v_add_u32', v(vXR+4+q), XS[2]*SLOT, v(vXR+q)), valu('v_add_u32', v(vXR+q), XS[0]*SLOT, v(vXR+q)))
    for q in range(4): B.add(valu('v_mov_b32', v(vOnes+q), '0x3f803f80'))
    B.add(raw("s_waitcnt lgkmcnt(0)", 'misc'))
    B.add(salu('s_cmp_eq_u32', 's5', 0),
          salu('s_cselect_b64', s(sX, 2), 's[36:37]', 's[46:47]'),
          salu('s_cselect_b64', s(sK, 2), 's[38:39]', 's[48:49]'),
          salu('s_cselect_b64', s(sV, 2), 's[40:41]', 's[50:51]'),
          salu('s_cselect_b64', s(sW, 2), 's[42:43]', 's[52:53]'))
    B.add(salu('s_lshl_b32', s(sT0), 's6', 18),
          salu('s_add_u32', s(sX), s(sX), s(sT0)), salu('s_addc_u32', s(sX+1), s(sX+1), 0),
          salu('s_mov_b32', s(sX+2), 262144), salu('s_mov_b32', s(sX+3), '0x00020000'),
          salu('s_lshl_b32', s(sT0), 's7', 9),
          salu('s_add_u32', s(sW), s(sW), s(sT0)), salu('s_addc_u32', s(sW+1), s(sW+1), 0),
          salu('s_sub_u32', s(sW+2), 4194304, s(sT0)), salu('s_mov_b32', s(sW+3), '0x00020000'),
          salu('s_lshl_b32', s(sT0), 's6', 4), salu('s_add_u32', s(sT0), s(sT0), 's7'), salu('s_lshl_b32', s(sT0), s(sT0), 19),
          salu('s_add_u32', s(sK), s(sK), s(sT0)), salu('s_addc_u32', s(sK+1), s(sK+1), 0),
          salu('s_mov_b32', s(sK+2), 524288), salu('s_mov_b32', s(sK+3), '0x00020000'),
          salu('s_add_u32', s(sV), s(sV), s(sT0)), salu('s_addc_u32', s(sV+1), s(sV+1), 0),
          salu('s_mov_b32', s(sV+2), 524288), salu('s_mov_b32', s(sV+3), '0x00020000'),
          salu('s_lshl_b32', s(sT0), 's5', 3), salu('s_add_u32', s(sT0), s(sT0), 's6'), salu('s_lshl_b32', s(sT0), s(sT0), 21),
          salu('s_add_u32', s(sO), 's60', s(sT0)), salu('s_addc_u32', s(sO+1), 's61', 0),
          salu('s_mov_b32', s(sO+2), 2097152), salu('s_mov_b32', s(sO+3), '0x00020000'),
          salu('s_cmp_eq_u32', 's5', 0), salu('s_cselect_b64', 's[80:81]', 's[44:45]', 's[54:55]'),
          salu('s_lshl_b32', s(sT0), 's6', 4), salu('s_add_u32', s(sT0), s(sT0), 's7'), salu('s_lshl_b32', s(sT0), s(sT0), 15),
          salu('s_add_u32', 's80', 's80', s(sT0)), salu('s_addc_u32', 's81', 's81', 0),
          salu('s_mov_b32', 's82', 32768), salu('s_mov_b32', 's83', '0x00020000'),
          salu('s_lshl_b32', s(sOoff), 's7', 13),
          salu('s_mov_b32', s(sC), hex(SCALE)), salu('s_mov_b32', s(sC+1), hex(SCALE)),
          salu('s_mov_b32', s(sThr), '0x5f800000'),
          salu('s_mov_b32', s(sItem), 0), salu('s_mov_b32', s(sSlot), SLOT))
    B.add(salu('s_cmp_eq_u32', 's5', 0), salu('s_cselect_b64', 's[48:49]', 's[44:45]', 's[54:55]'),
          salu('s_lshl_b32', s(sT0), 's4', 7),
          salu('s_add_u32', s(sA), 's48', s(sT0)), salu('s_addc_u32', s(sA+1), 's49', 0),
          salu('s_sub_u32', s(sA+2), 4194304, s(sT0)), salu('s_mov_b32', s(sA+3), '0x00020000'),
          salu('s_and_b32', s(sT1), 's3', 3), salu('s_lshl_b32', s(sT1), s(sT1), 2),
          salu('s_bfe_u32', s(sT2), 's2', 0x20003), salu('s_add_u32', s(sT1), s(sT1), s(sT2)),
          salu('s_lshl_b32', s(sT2), 's5', 4), salu('s_add_u32', s(sT2), s(sT2), s(sT1)),
          salu('s_lshr_b32', s(sGc), s(sT2), 1), salu('s_lshl_b32', s(sGc), s(sGc), 2),
          salu('s_lshl_b32', s(sT2), s(sT2), 20),
          salu('s_add_u32', s(sB), 's60', s(sT2)), salu('s_addc_u32', s(sB+1), 's61', 0),
          salu('s_mov_b32', s(sB+2), 1048576), salu('s_mov_b32', s(sB+3), '0x00020000'),
          salu('s_lshl_b32', s(sT1), s(sT1), 18), salu('s_add_u32', s(sT0), s(sT0), s(sT1)),
          salu('s_lshl_b32', s(sT1), 's5', 10), salu('s_add_u32', s(sT0), s(sT0), s(sT1)),
          salu('s_add_u32', s(sOut), 's56', s(sT0)), salu('s_addc_u32', s(sOut+1), 's57', 0),
          salu('s_sub_u32', s(sOut+2), 4194304, s(sT0)), salu('s_mov_b32', s(sOut+3), '0x00020000'),
          salu('s_lshl_b32', s(sGp), 's5', 3), salu('s_add_u32', s(sGp), s(sGp), 's6'), salu('s_lshl_b32', s(sGp), s(sGp), 2),
          salu('s_mov_b32', s(sSig), 99))
    B.add(valu('v_mov_b32', v(vGp), s(sGp)), valu('v_mov_b32', v(vGc), s(sGc)), valu('v_mov_b32', v(vOne), 1))
    return B

C1, C2 = 128, 192
def signal(off, lab):
    L = [raw("s_mov_b64 exec, 1", 'salu', w=['exec']),
            Ins(f"global_atomic_add v{vGp}, v{vOne}, s[58:59] offset:{off} sc1", 'vmem', [f"v{vGp}", f"v{vOne}", 's58', 's59'], [], tag='SIG'),
            raw("s_mov_b64 exec, -1", 'salu', w=['exec']), label(lab)]
    for i in L: i.meta = dict(i.meta, cond=True)
    return L
def poll(off, d, tag):
    return Ins(f"global_load_dword v{d}, v{vGc}, s[58:59] offset:{off} sc1", 'vmem', [f"v{vGc}", 's58', 's59'], [f"v{d}"], tag=tag)
def spin_text(name, off, back):
    return f'''{name}:
    s_mov_b32 s57, 0x40000
{name}_l:
    s_sleep 4
    global_load_dword v{vPoll}, v{vGc}, s[58:59] offset:{off} sc1
    s_waitcnt vmcnt(0)
    v_readfirstlane_b32 s56, v{vPoll}
    s_nop 3
    s_cmp_ge_u32 s56, 16
    s_cbranch_scc1 {back}
    s_sub_u32 s57, s57, 1
    s_cbranch_scc0 {name}_l
    s_branch {back}'''

def xdma(beta, m):
    kg, j = divmod(beta, 4)
    su = [salu('s_add_u32', 'm0', s(sW4k), XS[beta % 4]*SLOT + 1024*m)]
    if m == 0: su.append(salu('s_mov_b32', s(sJ), 16384*j + 256*kg))
    return su, bdma(v(vXD+m), s(sX, 4), s(sJ), 0, tag=('X', beta), flags=OPT['x_flags'])
def xread(beta, ks):
    kg, j = divmod(beta, 4); sg = beta % 4
    d = vX + (kg % 2)*64 + (j*4+ks)*4
    return dsr('ds_read_b128', v(d, 4), v(vXR + 4*(sg//2) + ks), SLOT*(sg % 2))
def wdma(c, m):
    kg, dq = divmod(c, 4)
    return [salu('s_add_u32', 'm0', s(sW4k), WBASE + SLOT*(c % 4) + 1024*m),
            salu('s_mov_b32', s(sT0 + (m & 1)), kg*128*8192 + m*65536 + dq*128)], \
           bdma(v(vWD), s(sW, 4), s(sT0 + (m & 1)), 0, tag=('W', c), flags=OPT['w_flags'])
def kv_static(kind, n):
    if kind == 'K':
        setup = [salu('s_add_u32', 'm0', s(sW4k), KBASE + SLOT*(n % NSL)), salu('s_mov_b32', s(sT2), n*SLOT)]
        return setup, [bdma(v(vKD+m), s(sK, 4), s(sT2), 1024*m, tag=('K', n), flags=OPT['kv_flags']) for m in range(4)]
    setup = [salu('s_add_u32', 'm0', s(sW4k), VBASE + SLOT*((n+2) % NSL)), salu('s_mov_b32', s(sT2), n*SLOT)]
    return setup, [bdma(v(vVD+(m & 1)), s(sV, 4), s(sT2), 1024*m, tag=('V', n), flags=OPT['kv_flags']) for m in range(4)]
def wread(T, n):
    c, tp = divmod(T, 4); sl, e = divmod(tp, 2); ks, hh = divmod(n, 2)
    d = vWf + (T % 2)*16 + ks*4 + hh*2
    return dsr('ds_read_b64_tr_b16', v(d, 2), v(vWA+sl), SLOT*(c % 4) + 4096*ks + 512*hh + 8*e)

def k1_qproj():
    pre = Block('qpre')
    for m in range(4):
        su, d = wdma(0, m); pre.add(su, d)
    for beta in range(4):
        for m in range(4):
            su, d = xdma(beta, m); pre.add(su, d)
    for c in range(1, 4):
        for m in range(4):
            su, d = wdma(c, m); pre.add(su, d)
    for beta in range(4):
        pre.add(waitvm((lambda b_: lambda ctx: [('X', b_)])(beta)))
        if beta == 0:
            pre.add(barrier()); pre.add(stamp(1))
            for n in range(8): pre.add(wread(0, n))
        if beta == 1: pre.add(waitlg(R('v', vWf, 16)))
        if beta == 3: pre.add(waitlg(R('v', vX, 16)))
        for ks in range(4): pre.add(xread(beta, ks))
    pre.add(waitlg(R('v', vX, 64)))
    S = Sched()
    for T in range(64):
        c, tp = divmod(T, 4); kg, dq = divmod(c, 4); sl, e = divmod(tp, 2)
        head = dq >> 1; ss = 2*(dq & 1) + sl
        for j in range(4):
            acc = a(128*head + ((j*4+ss)*2+e)*4, 4)
            for ks in range(4):
                S.add_mfma(mfma(acc, v(vWf + (T % 2)*16 + ks*4, 4), v(vX + (kg % 2)*64 + (j*4+ks)*4, 4),
                                '0' if (kg == 0 and ks == 0) else acc))
        if T + 1 < 64:
            for n in range(8): S.put(16*T + 4 + n, wread(T+1, n), 'mem')
            S.put(16*T + 15, waitlg(R('v', vWf + ((T+1) % 2)*16, 8)), 'free')
        if T: S.put(16*T + 1, waitlg(R('v', vWf + (T % 2)*16 + 8, 8)), 'free')
    x_dma = {4: 0, 5: 0, 6: 0, 7: 1, 8: 3, 9: 3, 10: 4, 11: 5, 12: 6, 13: 7, 14: 8, 15: 9}
    x_rd = {4: 2, 5: 2, 6: 3, 7: 3, 8: 5, 9: 6, 10: 7, 11: 7, 12: 8, 13: 9, 14: 10, 15: 11}
    kv = OPT.get('kv_sched') or {7: [('K', 0)], 8: [('V', 0)], 9: [('K', 1)], 10: [('K', 2)], 11: [('V', 1)], 12: [('V', 2)],
                                 13: [('K', 3)], 14: [('K', 4)], 15: [('V', 3)]}
    for c in range(16):
        b = 64*c
        rb = [be for be, cc in x_rd.items() if cc == c]
        g = b
        for be in rb:
            for ks in range(4):
                S.put(g, xread(be, ks), 'mem'); g += 1
                if g % 16 == 4: g += 8
        def slots():
            g = b + 16
            while True:
                if g % 16 in (12, 14, 0, 2) or (g % 16 in (13, 1, 3) and dense): yield g
                g += 1
        todo = []
        if 4 <= c + 3 < 16:
            for m in range(4): todo.append(wdma(c+3, m))
        for be in [be for be, cc in x_dma.items() if cc == c]:
            for m in range(4): todo.append(xdma(be, m))
        for kind, n in kv.get(c, []):
            su, ds_ = kv_static(kind, n)
            for m, d in enumerate(ds_): todo.append((su if m == 0 else [], d))
        dense = len(todo) > 9
        sl_ = slots()
        for su, d in todo:
            g = next(sl_)
            assert g < b + 51 or g > b + 52
            for i_ in su: S.put(g-1 if 'm0' in i_.w else g, i_, 'valu' if 'm0' in i_.w else 'free')
            S.put(g, d, 'mem')
        tags = [('W', c+1)] if c < 15 else [('K', 0)]
        tags += [('X', be) for be, cc in x_rd.items() if cc == c+1]
        S.put(b + 51, waitvm((lambda t: lambda ctx: t)(tags)), 'free')
        if OPT.get('qstamps'):
            for i_ in stamp(50): S.put(b + 51, i_, 'free')
        S.put(b + 51, barrier(), 'free')
        if OPT.get('qstamps'):
            for i_ in stamp(50): S.put(b + 51, i_, 'free')
    body = Block('qproj', S.flatten(0, 1024))
    cv = Block('qcvt')
    cv.add(stamp(2))
    for q in range(4): cv.add(dsr('ds_read_b128', v(vKf+4*q, 4), v(vKA+q), 0))
    tmp = [48, 56, 80, 88]
    for head in (1, 0):
        for f in range(16):
            t = tmp[f % 4]
            for r in range(8): cv.add(valu('v_accvgpr_read_b32', v(t+r), a(128*head + 8*f + r)))
            for r in range(0, 8, 2): cv.add(valu('v_pk_mul_f32', v(t+r, 2), v(t+r, 2), s(sC, 2)))
            for r in range(4):
                d = vQ + 4*f + r if head == 0 else t + r
                cv.add(valu('v_cvt_pk_bf16_f32', v(d), v(t+2*r), v(t+2*r+1)))
            if head == 1:
                for r in range(4): cv.add(valu('v_accvgpr_write_b32', a(aQ2 + 4*f + r), v(t+r)))
    if OPT['wo_warm'] == 1: cv.add(wo_touch())
    cv.add(salu('s_mov_b32', s(sKoff), 5*SLOT), salu('s_mov_b32', s(sVoff), 4*SLOT),
           salu('s_add_u32', s(sKm0), s(sW4k), KBASE), salu('s_add_u32', s(sVm0), s(sW4k), VBASE + SLOT),
           salu('s_mov_b32', s(sKrs), 0), salu('s_mov_b32', s(sVrs), SLOT))
    return pre, body, cv

def qk(j, q, first_c, kbuf=vKf):
    D = v(vS + 4*j, 4)
    return mfma(D, v(kbuf + 4*q, 4), v(vQ + (4*j+q)*4, 4), first_c if q == 0 else D)
def Preg(par, u, j): return vP + par*32 + (u*4+j)*4
def sm_ops(par, t, j):
    ex = [valu('v_exp_f32', v(vS+4*j+r), v(vS+4*j+r)) for r in range(4)]
    p = Preg(par, t//2, j) + (t % 2)*2
    cv = [valu('v_cvt_pk_bf16_f32', v(p+h), v(vS+4*j+2*h), v(vS+4*j+2*h+1)) for h in range(2)]
    return ex, cv
def kread(t, q, kbuf=vKf): return dsr('ds_read_b128', v(kbuf+4*q, 4), v(vKA+q), 4096*t)
def vread(dt, u, e):
    return dsr('ds_read_b64_tr_b16', v(vVf + (dt % 2)*8 + u*4 + e*2, 2), v(vVA+dt), 8192*u + 4096*e)
def ring_read_adv(srs, sd):
    return [salu('s_add_u32', s(srs), s(srs), SLOT), salu('s_cmp_eq_u32', s(srs), NSL*SLOT),
            salu('s_cselect_b32', s(sd), hex((SLOT - NSL*SLOT) & 0xffffffff), s(sSlot)), salu('s_cselect_b32', s(srs), 0, s(srs))]
def ring_dma_adv(sm0, soff, lim):
    return [salu('s_add_u32', s(soff), s(soff), SLOT), salu('s_add_u32', s(sm0), s(sm0), SLOT),
            salu('s_cmp_ge_u32', s(sm0), lim), salu('s_cselect_b32', s(sT0), NSL*SLOT, 0), salu('s_sub_u32', s(sm0), s(sm0), s(sT0))]
def kv_dyn(kind, m):
    if kind == 'K':
        return bdma(v(vKD+m), s(sK, 4), s(sKoff), 1024*m, tag=lambda i: ('K', i+4), flags=OPT['kv_flags'])
    return bdma(v(vVD+(m & 1)), s(sV, 4), s(sVoff), 1024*m, tag=lambda i: ('V', i+3), flags=OPT['kv_flags'])

def k1_m0():
    B = Block('m0')
    B.add(waitlg(R('v', vKf, 16)))
    for j in range(4):
        for q in range(4): B.add(qk(j, q, '0'))
    m = vT; c = vT+4
    for j in range(4): B.add(valu('v_max3_f32', v(m+j), v(vS+4*j), v(vS+4*j+1), v(vS+4*j+2)))
    for j in range(4): B.add(valu('v_max_f32', v(m+j), v(m+j), v(vS+4*j+3)))
    for op in ('v_permlane16_swap_b32', 'v_permlane32_swap_b32'):
        for j in range(4): B.add(valu('v_mov_b32', v(c+j), v(m+j)))
        for j in range(4): B.add(valu(op, v(m+j), v(c+j)))
        for j in range(4): B.add(valu('v_max_f32', v(m+j), v(m+j), v(c+j)))
    for j in range(4):
        for r in range(4): B.add(valu('v_sub_f32', v(vNeg+4*j+r), 0, v(m+j)))
    return B

def head_ops(S, par_prev):
    ex, cv = sm_ops(par_prev, 3, 3)
    S.put(0, ex[1], 'valu'); S.put(1, cv[0], 'valu'); S.put(2, ex[2], 'valu'); S.put(4, ex[3], 'valu'); S.put(5, cv[1], 'valu')

def k1_iter0():
    S = Sched()
    bufB = vP + 32
    for t in range(4):
        kb = vKf if t % 2 == 0 else bufB
        for j in range(4):
            for q in range(4): S.add_mfma(qk(j, q, v(vNeg+4*j, 4), kb))
        if t < 3:
            nb = bufB if t % 2 == 0 else vKf
            for q in range(4): S.put(16*t + 1 + 2*q, kread(t+1, q, nb), 'mem')
            S.put(16*t + 15, waitlg(R('v', nb, 16)), 'free')
    for t in range(4):
        for j in range(4):
            ex, cv = sm_ops(0, t, j)
            g0 = 16*t + 4*j + 7
            if (t, j) == (3, 3):
                S.put(63, ex[0], 'valu'); continue
            seq = [(g0, ex[0]), (g0+1, ex[1]), (g0+2, ex[2]), (g0+2, cv[0]), (g0+3, ex[3]), (g0+4, cv[1])]
            for g, i in seq: S.put(min(g, 63), i, 'valu')
    for n, i in enumerate(ring_read_adv(sKrs, sKd)): S.put(2+n, i, 'free')
    for n, i in enumerate(ring_read_adv(sVrs, sVd)): S.put(8+n, i, 'free')
    for dt in range(8): S.put(16 + 2*dt, valu('v_add_u32', v(vVA+dt), s(sVd), v(vVA+dt)), 'valu')
    for q in range(4): S.put(42 + q, valu('v_add_u32', v(vKA+q), s(sKd), v(vKA+q)), 'valu')
    S.put(49, waitvm(lambda i: [('K', i+1), ('V', i)]), 'free'); S.put(49, barrier(), 'free')
    for q in range(4): S.put(51 + 2*q, kread(0, q), 'mem')
    S.put(62, waitlg(R('v', vKf, 16)), 'free') if False else None
    for n, (u, e) in enumerate(((0, 0), (0, 1), (1, 0))): S.put(59 + 2*n if n < 2 else 62, vread(0, u, e), 'mem')
    S.put(63, waitlg(R('v', vKf, 16)), 'free')
    return Block('iter0', S.flatten(0, 64))

def pv_group(S, p, par_prev, first):
    for dt in (2*p, 2*p+1):
        for j in range(4):
            D = a(aO + (dt*4+j)*4, 4)
            for u in range(2):
                S.add_mfma(mfma(D, v(vVf + (dt % 2)*8 + u*4, 4), v(Preg(par_prev, u, j), 4), '0' if (first and u == 0) else D))
    D = v(vL + 4*p, 4)
    for u in range(2):
        S.add_mfma(mfma(D, v(vOnes, 4), v(Preg(par_prev, u, p), 4), '0' if (first and u == 0) else D))

def k1_body(name, par, first=False, loop_end=None):
    S = Sched()
    for p in range(4):
        for j in range(4):
            for q in range(4): S.add_mfma(qk(j, q, v(vNeg+4*j, 4)))
        pv_group(S, p, 1-par, first)
    head_ops(S, 1-par)
    for t in range(4):
        b = 34*t
        for j in range(4):
            ex, cv = sm_ops(par, t, j)
            g0 = b + 8 + 8*j
            for g, i in [(g0, ex[0]), (g0+2, ex[1]), (g0+3, cv[0]), (g0+4, ex[2]), (g0+6, ex[3]), (g0+7, cv[1])]:
                if g < 136: S.put(g, i, 'valu')
        for q in range(4): S.put(b + 19 + 2*q, kread((t+1) % 4, q), 'mem')
        S.put(b + 32, waitlg(R('v', vKf, 16)), 'free')
        S.put(b + 1, vread(2*t, 1, 1), 'mem')
        for n, (u, e) in enumerate(((0, 0), (0, 1), (1, 0), (1, 1))): S.put(b + 3 + 2*n, vread(2*t+1, u, e), 'mem')
        S.put(b + 14, waitlg(R('v', vVf, 16)), 'free')
        for n, (u, e) in enumerate(((0, 0), (0, 1), (1, 0))): S.put(b + 29 + 2*n, vread((2*t+2) % 8, u, e), 'mem')
        for n in range(2): S.put(b + 21 + 4*n, valu('v_add_u32', v(vVA+2*t+n), s(sVd), v(vVA+2*t+n)), 'valu')
        kind = 'K' if t < 2 else 'V'
        for n in range(2): S.put(b + 11 + 16*n, kv_dyn(kind, 2*(t % 2) + n), 'mem')
    for n, g in enumerate((3, 7, 9, 13)): S.put(102 + g, valu('v_add_u32', v(vKA+n), s(sKd), v(vKA+n)), 'valu')
    S.put(10, salu('s_mov_b32', 'm0', s(sKm0)), 'free')
    S.put(68 + 10, salu('s_mov_b32', 'm0', s(sVm0)), 'free')
    for n, i in enumerate(ring_read_adv(sVrs, sVd)): S.put(2 + 2*n, i, 'free')
    for n, i in enumerate(ring_read_adv(sKrs, sKd)): S.put(36 + 2*n, i, 'free')
    for n, i in enumerate(ring_dma_adv(sKm0, sKoff, NSL*SLOT)): S.put(64 + 2*n - (0 if n < 1 else 0) + (24 if False else 0), i, 'free') if False else None
    for n, i in enumerate(ring_dma_adv(sKm0, sKoff, NSL*SLOT)): S.put(84 + 2*n, i, 'free')
    if OPT.get('lstamps'):
        for i_ in stamp(60): S.put(102 + 17, i_, 'free')
    S.put(102 + 17, waitvm(lambda i: [('K', i+1), ('V', i)] + ([('O', 0)] if i == 19 else [])), 'free'); S.put(102 + 17, barrier(), 'free')
    if loop_end:
        S.put(102 + 18, salu('s_cmp_eq_u32', s(sCnt), s(sSig)), 'free')
        S.put(102 + 20, raw("s_cbranch_scc0 L_nosig1", 'branch', r=['scc']), 'free')
        for i_ in signal(C1, 'L_nosig1'): S.put(102 + 20, i_, 'free')
    if OPT.get('lstamps'):
        for i_ in stamp(60): S.put(102 + 17, i_, 'free')
    adv = ring_dma_adv(sVm0, sVoff, 2*NSL*SLOT)
    for n, i in enumerate(adv): S.put(102 + 28 + n, i, 'free')
    ins = S.flatten(0, 136)
    B = Block(name, ins)
    if loop_end:
        B.add(salu('s_sub_u32', s(sCnt), s(sCnt), 1), raw(f"s_cbranch_scc0 {loop_end}", 'branch', r=['scc']))
    B.sched = S
    return B

def k1_drain():
    S = Sched()
    for p in range(4): pv_group(S, p, 1, False)
    head_ops(S, 1)
    B = Block('drain')
    B.add(vread(0, 1, 1))
    for (u, e) in ((0, 0), (0, 1), (1, 0), (1, 1)): B.add(vread(1, u, e))
    B.add(waitlg(R('v', vVf, 8)))
    for p in range(4):
        b = 18*p
        S.put(b + 7, waitlg(R('v', vVf + 8, 8)), 'free')
        if p < 3:
            for n, (u, e) in enumerate(((0, 0), (0, 1), (1, 0), (1, 1))):
                S.put(b + 8 + n, vread(2*p+2, u, e), 'mem')
                S.put(b + 16 + n, vread(2*p+3, u, e), 'mem')
            S.put(b + 17, waitlg(R('v', vVf, 8)), 'free')
    S.put(12, salu('s_mov_b32', 'm0', s(sKm0)), 'free')
    for m in range(4): S.put(13 + 6*m if m else 13, kv_dyn('K', m), 'mem') if False else None
    for m, g in enumerate((13, 15, 23, 25)): S.put(g, kv_dyn('K', m), 'mem')
    S.put(30, salu('s_mov_b32', 'm0', s(sVm0)), 'free')
    for m, g in enumerate((31, 33, 41, 43)): S.put(g, kv_dyn('V', m), 'mem')
    S.put(51, poll(C1, vPoll, 'P1'), 'mem')
    for n, i in enumerate(ring_dma_adv(sKm0, sKoff, NSL*SLOT)): S.put(46 + n, i, 'free')
    for n, i in enumerate(ring_dma_adv(sVm0, sVoff, 2*NSL*SLOT)): S.put(56 + n, i, 'free')
    B.add(S.flatten(0, 72))
    return B

def k1_check():
    B = Block('chk')
    B.add(valu('v_add_f32', v(vT), v(vL), v(vL+4)), valu('v_add_f32', v(vT+1), v(vL+8), v(vL+12)),
          valu('v_add_f32', v(vT), v(vT), v(vT+1)),
          valu('v_cmp_nge_f32', 'vcc', s(sThr), v(vT)),
          salu('s_cmp_lg_u64', 'vcc', 0),
          raw("s_cbranch_scc1 L_slow", 'branch', r=['scc']))
    return B

def epi_groups(item):
    rl = vT
    G = [[valu('v_rcp_f32', v(rl+2*j), v(vL+4*j)) for j in range(4)]]
    n = 0
    for j in range(4):
        for sp in range(4):
            g = []
            if sp == 0: g.append(salu('s_add_u32', s(sT2), s(sOoff), 131072*j))
            t = vP + (n % 4)*8; d = vP + 32 + (n % 8)*4; n += 1
            for h in range(2):
                for r in range(4): g.append(valu('v_accvgpr_read_b32', v(t+4*h+r), a(aO + ((2*sp+h)*4+j)*4 + r)))
            for r in range(0, 8, 2): g.append(valu('v_pk_mul_f32', v(t+r, 2), v(t+r, 2), v(rl+2*j, 2), extra='op_sel_hi:[1,0]'))
            for r in range(4): g.append(valu('v_cvt_pk_bf16_f32', v(d+r), v(t+2*r), v(t+2*r+1)))
            g.append(bstore('buffer_store_dwordx4', v(d, 4), v(vOst), s(sO, 4), s(sT2), 1024*sp, tag=('O', item), flags=OPT['o_flags']))
            G.append(g)
    return G

def k1_epi():
    B = Block('epi')
    for g in epi_groups(0): B.add(g)
    return B

def k1_next():
    B = Block('next')
    for r in range(64): B.add(valu('v_accvgpr_read_b32', v(vQ+r), a(aQ2+r)))
    B.add(salu('s_mov_b32', s(sItem), 1), salu('s_add_u32', s(sOoff), s(sOoff), 4096),
          salu('s_cmp_eq_u32', s(sWv), 0), salu('s_cselect_b32', s(sSig), 6, 99))
    B.add(raw("s_branch L_item", 'branch'))
    return B

def k1_slow():
    kf, Sx, Pp = vP, vP+32, vS
    m, l, al, t = vNeg, vNeg+4, vNeg+8, vNeg+12
    ak, av = vT+8, vT+9
    pk = vVf
    pre = Block('slow_pre')
    pre.add(valu('v_and_b32', 'v1', 63, 'v0'), valu('v_and_b32', 'v3', 15, 'v0'), valu('v_lshrrev_b32', 'v4', 4, 'v1'),
            valu('v_lshlrev_b32', v(ak), 8, 'v3'), valu('v_lshl_add_u32', v(ak), 'v4', 4, v(ak)),
            valu('v_lshlrev_b32', v(av), 10, 'v4'), valu('v_lshl_add_u32', v(av), 'v3', 1, v(av)))
    for j in range(4): pre.add(valu('v_mov_b32', v(m+j), '0xff800000'), valu('v_mov_b32', v(l+j), 0))
    for r in range(128): pre.add(valu('v_accvgpr_write_b32', a(aO+r), 0))
    pre.add(salu('s_lshl_b32', s(sT0), s(sItem), 18), salu('s_add_u32', s(sT1), s(sT0), 4096), salu('s_mov_b32', s(sCnt), 31))
    L = Block('slow_loop')
    for tt in range(2):
        for q in range(4):
            L.add(bload('buffer_load_dwordx4', v(kf+(tt*4+q)*4, 4), v(ak), s(sK, 4), s(sT0+tt), 64*q))
    L.add(waitvm0())
    for tt in range(2):
        for j in range(4):
            D = v(Sx + (j*2+tt)*4, 4)
            for q in range(4): L.add(mfma(D, v(kf+(tt*4+q)*4, 4), v(vQ+(4*j+q)*4, 4), '0' if q == 0 else D))
    for j in range(4):
        x = Sx + 8*j
        L.add(valu('v_max3_f32', v(t), v(x), v(x+1), v(x+2)), valu('v_max3_f32', v(t), v(t), v(x+3), v(x+4)),
              valu('v_max3_f32', v(t), v(t), v(x+5), v(x+6)), valu('v_max3_f32', v(t), v(t), v(x+7), v(m+j)))
        for op in ('v_permlane16_swap_b32', 'v_permlane32_swap_b32'):
            L.add(valu('v_mov_b32', v(t+1), v(t)), valu(op, v(t), v(t+1)), valu('v_max_f32', v(t), v(t), v(t+1)))
        L.add(valu('v_sub_f32', v(al+j), v(m+j), v(t)), valu('v_exp_f32', v(al+j), v(al+j)), valu('v_mov_b32', v(m+j), v(t)))
        L.add(valu('v_mul_f32', v(l+j), v(l+j), v(al+j)))
        for r in range(8):
            L.add(valu('v_sub_f32', v(x+r), v(x+r), v(t)), valu('v_exp_f32', v(x+r), v(x+r)))
        for r in range(8): L.add(valu('v_add_f32', v(l+j), v(l+j), v(x+r)))
        for r in range(4): L.add(valu('v_cvt_pk_bf16_f32', v(Pp+4*j+r), v(x+2*r), v(x+2*r+1)))
    for half in range(2):
        for d4 in range(4):
            dt = half*4 + d4
            for jj in range(8):
                L.add(bload('buffer_load_ushort', v(kf+d4*8+jj), v(av), s(sV, 4), s(sT0+(jj//4)), (jj % 4)*256 + 32*dt))
        if half == 0:
            for dt in range(8):
                for j in range(4):
                    for r in range(4):
                        x = aO + (dt*4+j)*4 + r
                        L.add(valu('v_accvgpr_read_b32', v(t+r), a(x)))
                    for r in range(4): L.add(valu('v_mul_f32', v(t+r), v(t+r), v(al+j)))
                    for r in range(4):
                        x = aO + (dt*4+j)*4 + r
                        L.add(valu('v_accvgpr_write_b32', a(x), v(t+r)))
        L.add(waitvm0())
        for d4 in range(4):
            dt = half*4 + d4
            for r in range(4): L.add(valu('v_lshl_or_b32', v(pk+4*d4+r), v(kf+d4*8+2*r+1), 16, v(kf+d4*8+2*r)))
        for d4 in range(4):
            dt = half*4 + d4
            for j in range(4):
                D = a(aO + (dt*4+j)*4, 4)
                L.add(mfma(D, v(pk+4*d4, 4), v(Pp+4*j, 4), D))
    L.add(salu('s_add_u32', s(sT0), s(sT0), 8192), salu('s_add_u32', s(sT1), s(sT1), 8192),
          salu('s_sub_u32', s(sCnt), s(sCnt), 1), raw("s_cbranch_scc0 L_slow_loop", 'branch', r=['scc']))
    post = Block('slow_post')
    for j in range(4):
        for op in ('v_permlane16_swap_b32', 'v_permlane32_swap_b32'):
            post.add(valu('v_mov_b32', v(t), v(l+j)), valu(op, v(l+j), v(t)), valu('v_add_f32', v(l+j), v(l+j), v(t)))
        post.add(valu('v_mov_b32', v(vL+4*j), v(l+j)))
    post.add(nop(7), raw("s_branch L_epi", 'branch'))
    return pre, L, post

def wo_touch():
    sWo = 80
    return [valu('v_and_b32', 'v1', 63, 'v0'), valu('v_lshlrev_b32', 'v1', 7, 'v1'),
            salu('s_lshl_b32', s(sT2), s(sWv), 13),
            bload('buffer_load_dword', 'v2', 'v1', s(sWo, 4), s(sT2), 0, tag='WO')]

def check_flag(spin, back):
    return [valu('v_readfirstlane_b32', 's56', v(vPoll)), salu('s_cmp_ge_u32', 's56', 16),
            raw(f"s_cbranch_scc0 {spin}", 'branch', r=['scc']), label(back)]

def phase3():
    vAA, vDW, vBO, vOut, vRW, vRR = 8, 16, 17, 18, 19, 21
    BB = (32, 160, 96)
    aA, aC = 0, 128
    PS = ((0, 1), (2, 4), (5, 6))
    NST = 16
    def hh(st): return 2*((st//2) % 4) + st//8
    def bl(st, jq, u):
        d = BB[st % 3] + (jq*2+u)*4
        return bload('buffer_load_dwordx4', v(d, 4), v(vBO), s(sB, 4), s(sQ+jq), (2*(st % 2)+u)*1024, tag=('B', st), flags=OPT['b_flags'])
    def q_setup(st): return [salu('s_mov_b32', s(sQ+jq), jq*131072 + hh(st)*4096) for jq in range(8)]
    def ad(st, m):
        u, mm = divmod(m, 4)
        return [salu('s_add_u32', 'm0', s(sW4k), PS[st % 3][u]*SLOT + 1024*mm),
                salu('s_mov_b32', s(sT0 + (m & 1)), (hh(st)*128 + (st % 2)*64 + m*8)*1024)], \
               bdma(v(vDW), s(sA, 4), s(sT0 + (m & 1)), 0, tag=('A', st), flags=OPT['a_flags'])
    def ar(st, nt, n):
        u, e = divmod(n, 2)
        sl = PS[st % 3][u]
        d = aA + (st % 2)*32 + (nt*2+u)*4 + e*2
        return dsr('ds_read_b64_tr_b16', a(d, 2), v(vAA + (sl//4)*4 + nt), (sl % 4)*SLOT + e*2048)
    E = Block('epi2')
    E.add(waitvm(lambda c: ['P1']), check_flag('L_spin1', 'L_back1'))
    E.add(valu('v_and_b32', 'v1', 63, 'v0'), valu('v_lshrrev_b32', 'v2', 6, 'v0'), valu('v_and_b32', 'v3', 15, 'v0'),
          valu('v_lshrrev_b32', 'v4', 4, 'v1'))
    E.add(valu('v_lshrrev_b32', 'v22', 3, 'v1'), valu('v_bfe_u32', 'v23', 'v1', 4, 2), valu('v_lshlrev_b32', 'v23', 1, 'v23'),
          valu('v_and_b32', 'v24', 7, 'v1'), valu('v_xor_b32', 'v23', 'v23', 'v24'),
          valu('v_lshl_add_u32', 'v22', 'v2', 10, 'v22'), valu('v_lshlrev_b32', 'v22', 10, 'v22'),
          valu('v_lshl_add_u32', v(vDW), 'v23', 4, 'v22'))
    E.add(valu('v_lshlrev_b32', 'v22', 15, 'v2'), valu('v_lshl_add_u32', v(vBO), 'v1', 4, 'v22'))
    for m in range(8):
        su, d = ad(0, m); E.add(su, d)
    E.add(q_setup(0))
    for jq in range(8):
        for u in range(2): E.add(bl(0, jq, u))
    late = []
    for m in range(8):
        su, d = ad(1, m); late.append(su + [d])
    for jq in range(8):
        for u in range(2): late.append([bl(1, jq, u)])
    for n, g in enumerate(epi_groups(1)):
        E.add(g)
        if n == 12: E.add(waitvm(lambda c: [('A', 0)]))
        if n >= 5:
            for _ in range(2):
                if late: E.add(late.pop(0))
    assert not late
    E.add(valu('v_bfe_u32', 'v5', 'v1', 2, 2), valu('v_lshl_add_u32', 'v22', 'v4', 2, 'v5'),
          valu('v_bfe_u32', 'v23', 'v22', 1, 2), valu('v_lshlrev_b32', 'v23', 5, 'v23'),
          valu('v_lshl_add_u32', 'v23', 'v22', 7, 'v23'), valu('v_and_b32', 'v24', 3, 'v1'), valu('v_lshl_add_u32', 'v23', 'v24', 3, 'v23'),
          valu('v_lshl_add_u32', 'v23', 'v2', 12, 'v23'))
    for nt in range(4): E.add(valu('v_xor_b32', v(vAA+nt), 32*nt, 'v23'))
    for nt in range(4): E.add(valu('v_add_u32', v(vAA+4+nt), 4*SLOT, v(vAA+nt)))
    E.add(waitvm(lambda c: [('A', 0)]))
    for nt in range(4):
        for n in range(4): E.add(ar(0, nt, n))
        if nt == 2: E.add(waitlg(R('a', aA, 8)))
    E.add(valu('v_lshl_add_u32', 'v22', 'v2', 5, 'v3'), valu('v_lshlrev_b32', 'v22', 11, 'v22'),
          valu('v_lshl_add_u32', v(vOut), 'v4', 3, 'v22'),
          valu('v_lshlrev_b32', 'v22', 4, 'v1'), valu('v_lshl_add_u32', v(vRW), 'v2', 12, 'v22'), valu('v_add_u32', v(vRW+1), 4*SLOT, v(vRW)),
          valu('v_lshl_add_u32', v(vRR), 'v2', 15, 'v22'))
    E.add(waitvm(lambda c: [('B', 0)]), waitlg(R('a', aA, 32)))
    S = Sched()
    for st in range(NST):
        b = 64*st
        order = [(nt, jq) for nt in range(4) for jq in range(8)] if st < NST-1 else [(nt, jq) for jq in range(8) for nt in range(4)]
        for nt, jq in order:
            D = a(aC + (nt*8+jq)*4, 4)
            for u in range(2):
                g = S.add_mfma(mfma(D, a(aA + (st % 2)*32 + (nt*2+u)*4, 4), v(BB[st % 3] + (jq*2+u)*4, 4),
                                    '0' if (st == 0 and u == 0) else D))
            if st == NST-1:
                S.put(min(g + 7, 64*NST - 1), dsw('ds_write_b128', v(vRW + jq//4), D, (jq % 4)*SLOT + nt*1024), 'mem')
                if (jq*4+nt) % 8 == 7 and g + 9 < 64*NST: S.put(g + 9, raw("s_waitcnt lgkmcnt(4)", 'wait'), 'free'); S.f[g+9]['free'][-1].meta = {'lg': 4}
        if st == 4: S.put(b + 17, poll(C2, vPoll, 'P2'), 'mem')
        if st == 6:
            S.put(b + 16, waitvm(lambda c: ['P2']), 'free')
            ck = check_flag('L_spin2', 'L_back2')
            S.put(b + 16, ck[0], 'valu'); S.put(b + 18, ck[1], 'valu'); S.put(b + 19, ck[2], 'valu'); S.put(b + 19, ck[3], 'valu')
        if st + 2 < NST:
            g = b
            for m in range(8):
                su, d = ad(st+2, m)
                S.put(g, su[0], 'free'); S.put(g+1, su[1], 'free'); S.put(g+1, d, 'mem'); g += 2
            if (st+2) % 2 == 0:
                for n, i in enumerate(q_setup(st+2)): S.put(b + 16 + n//2, i, 'free')
            for n, (jq, u) in enumerate((jq, u) for jq in range(8) for u in range(2)):
                S.put(b + 21 + 2*n, bl(st+2, jq, u), 'mem')
        if st + 1 < NST:
            S.put(b + 30, waitvm((lambda x: lambda c: [('A', x)])(st+1)), 'free')
            for n in range(16): S.put(b + 30 + 2*n, ar(st+1, n//4, n % 4), 'mem')
            S.put(b + 54, waitlg(R('a', aA + ((st+1) % 2)*32, 8)), 'free')
            S.put(b + 63, waitvm((lambda x: lambda c: [('B', x), ('O', 1)])(st+1)), 'free')
            S.put(b + 63, waitlg(R('a', aA + ((st+1) % 2)*32, 32)), 'free')
            if st == 0:
                S.put(b + 63, barrier(), 'free')
                S.put(b + 63, salu('s_cmp_eq_u32', s(sWv), 0), 'free')
                S.put(b + 63, raw("s_cbranch_scc0 L_nosig2", 'branch', r=['scc']), 'free')
                for i_ in signal(C2, 'L_nosig2'): S.put(b + 63, i_, 'free')
            if OPT.get('qstamps'):
                for i_ in stamp(50): S.put(b + 63, i_, 'free')
    body = Block('p3body', S.flatten(0, 64*NST))
    ep = Block('p3epi')
    ep.add(waitlg0(), barrier())
    vB = 32
    def rd(i):
        src, n = divmod(i, 8); qq, nt = divmod(n, 4)
        return dsr('ds_read_b128', v(vB + 4*i, 4), v(vRR), qq*SLOT + src*4096 + nt*1024)
    for i in range(14): ep.add(rd(i))
    for i in range(14, 32 + 6):
        if i < 32: ep.add(waitlg(R('v', vB + 4*(i-14), 4)), rd(i))
        k = i - 6
        if 8 <= k < 24:
            ep.add(waitlg(R('v', vB + 4*k, 4)))
            for r in range(4): ep.add(valu('v_add_f32', v(vB+4*(k % 8)+r), v(vB+4*(k % 8)+r), v(vB+4*k+r)))
    ep.add(salu('s_mov_b32', s(sT0), 0), salu('s_mov_b32', s(sT1), 16*2048), waitlg0())
    for n in range(8):
        qq, nt = divmod(n, 4)
        d = vB + 128 + 2*n
        for r in range(4): ep.add(valu('v_add_f32', v(vB+4*n+r), v(vB+4*n+r), v(vB+96+4*n+r)))
        ep.add(valu('v_cvt_pk_bf16_f32', v(d), v(vB+4*n), v(vB+4*n+1)), valu('v_cvt_pk_bf16_f32', v(d+1), v(vB+4*n+2), v(vB+4*n+3)))
        ep.add(bstore('buffer_store_dwordx2', v(d, 2), v(vOut), s(sOut, 4), s(sT0+qq), 32*nt))
    return E, body, ep

def gen_k1():
    pro = k1_prologue(); qpre, qproj, qcvt = k1_qproj()
    m0 = k1_m0(); it0 = k1_iter0()
    b1 = k1_body('b1f', 1, first=True); be = k1_body('beven', 0); bo = k1_body('bodd', 1, loop_end='L_loop')
    setc = Block('setc', [salu('s_mov_b32', s(sCnt), 6)])
    dr = k1_drain(); chk = k1_check(); epi = k1_epi(); nx = k1_next()
    sel = Block('sel', [salu('s_cmp_lg_u32', s(sItem), 0), raw("s_cbranch_scc1 L_epi2", 'branch', r=['scc'])])
    spre, sloop, spost = k1_slow()
    e2, p3, p3e = phase3()
    def item(base, slow):
        t = [(m0, base), (it0, base), (b1, base+1), (setc, 0)]
        for i in range(2, 16, 2): t += [(be, base+i), (bo, base+i+1)]
        t += [(dr, base+16), (chk, 0)]
        if slow: t += [(spre, 0), (sloop, 0), (sloop, 0), (spost, 0)]
        t += [(sel, 0)]
        t += [(epi, 0), (nx, 0)] if base == 0 else [(e2, 0), (p3, 0), (p3e, 0)]
        return t
    head = [(pro, 0), (qpre, 0), (qproj, 0), (qcvt, 0)]
    tr_fast = head + item(0, False) + item(16, False)
    tr_slow = head + item(0, True) + item(16, True)
    resolve_waits(tr_fast)
    fix = ('pro', 'qpre', 'qcvt', 'm0', 'chk', 'epi', 'next', 'slow_pre', 'slow_loop', 'slow_post', 'iter0', 'drain', 'epi2', 'p3epi', 'p3body')
    for tr in (tr_fast, tr_slow):
        e = hazards(tr, fix)
        if e: print("\n".join(e[:20])); raise SystemExit("hazards in k1")
    for tr in (tr_fast, tr_slow):
        e = check_waits(tr, verbose=True)
        if e: print("\n".join(e[:20])); raise SystemExit("wait errors in k1")
    over = [(g, be.sched.load(g)) for g in range(136) if be.sched.load(g)[1] > 2 or be.sched.load(g)[0] > 1]
    print("k1 body over-full gaps:", over, " nops in p3body:", sum(1 for i in p3.ins if i.k == 'nop'))
    out = []
    out += [pro.text(), qpre.text(), qproj.text(), qcvt.text()]
    out += ["L_item:", stamp_text(3), m0.text(), stamp_text(4), it0.text(), stamp_text(5), b1.text(), setc.text(), stamp_text(6), ".p2align 6", "L_loop:", be.text(), bo.text(), stamp_text(7), dr.text(), chk.text(),
            "L_epi:", stamp_text(8), sel.text(), epi.text(), stamp_text(9), nx.text()]
    out += ["L_slow:", spre.text(), "L_slow_loop:", sloop.text(), spost.text()]
    out += [spin_text('L_spin1', C1, 'L_back1'), spin_text('L_spin2', C2, 'L_back2')]
    out += ["L_epi2:", e2.text(), stamp_text(10), p3.text(), stamp_text(11), p3e.text(), stamp_text(12)]
    if OPT['stamps'] and OPT.get('dbgout'):
        out += ["""    v_and_b32 v1, 63, v0
    v_lshlrev_b32 v2, 2, v1
    v_cmp_gt_u32 vcc, 15, v1
    s_and_saveexec_b64 s[92:93], vcc
    s_cbranch_execz L_dbg_done
    global_atomic_umax v2, v255, s[58:59] sc1
    s_mov_b64 exec, 1
    v_not_b32 v3, v255
    global_atomic_umax v2, v3, s[58:59] offset:60 sc1
L_dbg_done:"""]
    elif OPT['stamps']:
        out += [stamp_out(0)]
    out += ["L_k1_end:", "    s_endpgm"]
    return "\n".join(out)

HEADER = open(os.path.join(os.path.dirname(os.path.abspath(__file__)), "header.txt")).read()

def desc(name):
    return f""".p2align 6
.amdhsa_kernel {name}
  .amdhsa_next_free_vgpr 512
  .amdhsa_next_free_sgpr 102
  .amdhsa_accum_offset 256
  .amdhsa_group_segment_fixed_size 0
  .amdhsa_kernarg_size 104
  .amdhsa_user_sgpr_count 2
  .amdhsa_user_sgpr_kernarg_segment_ptr 1
  .amdhsa_system_sgpr_workgroup_id_x 1
.end_amdhsa_kernel
"""

def main(path):
    k1 = gen_k1()
    n1 = NAME + "_kernel"
    txt = HEADER
    txt += f"; @launch grid=(256,1,1) block=(256,1,1) lds=163840\n"
    txt += f""".amdgcn_target "amdgcn-amd-amdhsa--gfx950"
.text
.globl {n1}
.p2align 8
.type {n1},@function
{n1}:
{k1}
.section .rodata,"a"
{desc(n1)}"""
    open(path, "w").write(txt)

if __name__ == "__main__":
    for kv in sys.argv[2:]:
        k_, v_ = kv.split('=')
        OPT[k_] = int(v_) if v_.lstrip('-').isdigit() else v_
    main(sys.argv[1] if len(sys.argv) > 1 else f"cdna_kernels/{NAME}.s")
```
